```python
import torch

def _softmax(x, axis=-1):
    return torch.softmax(x, dim=axis)

def _gelu(x):
    return torch.nn.functional.gelu(x, approximate='tanh')

def _silu(x):
    return torch.nn.functional.silu(x)

def _sigmoid(x):
    return torch.sigmoid(x)

def _layernorm(x, axis=-1, eps=1e-05):
    m = x.mean(dim=axis, keepdim=True)
    v = x.var(dim=axis, keepdim=True, unbiased=False)
    return (x - m) / torch.sqrt(v + eps)

def _scatter_add(tgt, idx, src, axis=0):
    return tgt.clone().index_add_(axis, idx, src)

def _segment_sum(src, seg, n):
    out = torch.zeros((n,) + src.shape[1:], dtype=src.dtype)
    return out.index_add_(0, seg, src)

def _pad(x, pw):
    flat = tuple((v for pair in reversed(pw) for v in pair))
    return torch.nn.functional.pad(x, flat)
kernel_name = 'standalone__autoregressive_conv_wavenet__speech'

def setup_inputs():

    _w = lambda a: (lambda t: t.to(torch.bfloat16) if t.is_floating_point() else t)(torch.as_tensor(a))
    B, T, D, K = (2, 16000, 256, 5)
    return {'x': _w((lambda *s: torch.randn(*s, dtype=torch.bfloat16) * 0.1)(B, T, D)), 'w': _w((lambda *s: torch.randn(*s, dtype=torch.bfloat16) * 0.1)(K, D, 2 * D)), 'w_o': _w((lambda *s: torch.randn(*s, dtype=torch.bfloat16) * 0.05)(D, D))}

def reference(x, w, w_o):
    B, T, D = x.shape
    K = w.shape[0]
    dil = 2
    pad = (K - 1) * dil
    xp = _pad(x, ((0, 0), (pad, 0), (0, 0)))
    h = torch.einsum('btc,cd->btd', xp[:, pad:pad + T, :], w[0])
    for i in range(1, K):
        off = pad - i * dil
        h = h + torch.einsum('btc,cd->btd', xp[:, off:off + T, :], w[i])
    f = h[..., :D].clone()
    g = h[..., D:].clone()
    z = torch.tanh(f) * _sigmoid(g)
    return z @ w_o
```

```python
import sys
import struct

NAME = "standalone__autoregressive_conv_wavenet__speech"

HEADER = """; Kernarg layout for this problem (48 bytes, ptrs only, base s[0:1]):
; @launch grid=(250,1,1) block=(512,1,1) lds=%d
.amdgcn_target "amdgcn-amd-amdhsa--gfx950"
.text
.globl %s_kernel
.p2align 8
.type %s_kernel,@function
%s_kernel:
"""

FOOTER = """
.section .rodata,"a"
.p2align 6
.amdhsa_kernel %s_kernel
  .amdhsa_next_free_vgpr 256
  .amdhsa_next_free_sgpr 102
  .amdhsa_accum_offset 256
  .amdhsa_group_segment_fixed_size 0
  .amdhsa_kernarg_size 48
  .amdhsa_user_sgpr_count 2
  .amdhsa_user_sgpr_kernarg_segment_ptr 1
  .amdhsa_system_sgpr_workgroup_id_x 1
.end_amdhsa_kernel
"""

PIECE = 1056
CHUNK = 17 * PIECE
XBYTES = 4 * CHUNK
ZBASE = XBYTES
LDS_TOTAL = XBYTES + 65536


def f32bits(x):
    return struct.unpack("<I", struct.pack("<f", x))[0]


ACC = 0
BREG = 128
AREG = 160
RAW = 192
NRAW = 20
V_W0, V_W1, V_X, V_Z, V_WO, V_OUT, V_T0, V_T1, V_T2, V_LANE = 232, 233, 234, 235, 236, 237, 238, 239, 240, 241

S_X, S_W, S_WO, S_OUT = 12, 16, 20, 24
S_WAVE = 28
S_IT = 30
S_CNT = 31
S_SOFF = (32, 33)
S_T0, S_T1, S_T2, S_T3 = 34, 35, 36, 37
S_G0 = 38
S_PLO, S_PHI = 40, 41
S_C1, S_C2, S_CL = 42, 43, 44


def acc(a, j):
    return ACC + (j * 4 + a) * 4


def vr(b, n):
    return "v[%d:%d]" % (b, b + n - 1)


def srd(b):
    return "s[%d:%d]" % (b, b + 3)


class Em:
    def __init__(self):
        self.lines = []
        self.vm = []
        self.lg = []

    def e(self, s):
        self.lines.append("    " + s)

    def label(self, s):
        self.lines.append(s + ":")

    def vmop(self, s, tag):
        self.e(s)
        self.vm.append(tag)

    def lgop(self, s, tag):
        self.e(s)
        self.lg.append(tag)

    def wait_vm(self, tag):
        if tag in self.vm:
            idx = len(self.vm) - 1 - self.vm[::-1].index(tag)
            n = len(self.vm) - 1 - idx
            self.e("s_waitcnt vmcnt(%d)" % min(n, 63))
            self.vm = self.vm[idx + 1:]

    def wait_lg(self, tag):
        if tag in self.lg:
            idx = len(self.lg) - 1 - self.lg[::-1].index(tag)
            n = len(self.lg) - 1 - idx
            self.e("s_waitcnt lgkmcnt(%d)" % min(n, 15))
            self.lg = self.lg[idx + 1:]

    def wait_all(self):
        self.e("s_waitcnt vmcnt(0) lgkmcnt(0)")
        self.vm = []
        self.lg = []


class Pipe:
    def __init__(self, em, load_fn, bkey_fn, bread_fn, pre_fn=None, czero_fn=None, nsteps=None,
                 bbreak=()):
        self.em = em
        self.load_fn = load_fn
        self.bkey_fn = bkey_fn
        self.bread_fn = bread_fn
        self.pre_fn = pre_fn
        self.czero_fn = czero_fn
        self.nsteps = nsteps
        self.bbreak = set(bbreak)
        self.slotkey = [None] * 8

    def rawreg(self, step, row):
        return RAW + 2 * ((8 * step + row) % NRAW)

    def valid(self, step):
        return self.nsteps is None or step < self.nsteps

    def load(self, step, row):
        if not self.valid(step):
            return None
        t = self.load_fn(step, row, self.rawreg(step, row))
        return ("vm", t, ("raw", step, row))

    def perm_items(self, step):
        items = []
        if not self.valid(step):
            return items
        ab = AREG + 16 * (step % 2)
        for p in range(4):
            r0 = self.rawreg(step, 2 * p)
            r1 = self.rawreg(step, 2 * p + 1)
            items.append(("wvm", ("raw", step, 2 * p + 1)))
            for h in range(2):
                items.append(("op", "v_perm_b32 v%d, v%d, v%d, s%d" % (ab + 4 * (2 * h) + p, r1 + h, r0 + h, S_PLO)))
                items.append(("op", "v_perm_b32 v%d, v%d, v%d, s%d" % (ab + 4 * (2 * h + 1) + p, r1 + h, r0 + h, S_PHI)))
            for r in (2 * p, 2 * p + 1):
                g = 8 * step + r + NRAW
                ld = self.load(g // 8, g % 8)
                if ld:
                    items.append(ld)
        return items

    def emit_item(self, it):
        em = self.em
        if it[0] == "op":
            em.e(it[1])
        elif it[0] == "vm":
            em.vmop(it[1], it[2])
        elif it[0] == "lg":
            em.lgop(it[1], it[2])
        elif it[0] == "wvm":
            em.wait_vm(it[1])
        elif it[0] == "wlg":
            em.wait_lg(it[1])

    def bread(self, step, j):
        slot, key = self.bkey_fn(step, j)
        if self.slotkey[slot] == key:
            return None
        self.slotkey[slot] = key
        return ("lg", self.bread_fn(step, j, BREG + 4 * slot), ("b", key))

    def fill_ring(self, first):
        for g in range(8 * first, 8 * first + NRAW):
            ld = self.load(g // 8, g % 8)
            if ld:
                self.emit_item(ld)

    def cold_b(self, step):
        for j in range(7, -1, -1):
            it = self.bread(step, j)
            if it:
                self.emit_item(it)

    def virtual_step(self, step):
        if self.pre_fn:
            for t in self.pre_fn(step):
                self.em.e(t)
        for it in self.perm_items(step + 1):
            self.emit_item(it)

    def step(self, step):
        em = self.em
        if step in self.bbreak:
            self.cold_b(step)
        ab = AREG + 16 * (step % 2)
        gaps = [[] for _ in range(32)]
        if self.pre_fn:
            for t in self.pre_fn(step):
                gaps[0].append(("op", t))
        items = self.perm_items(step + 1)
        pos = 1
        for it in items:
            gaps[pos].append(it)
            if it[0] != "wvm":
                pos += 1
        assert pos <= 30, pos
        slots = [self.bkey_fn(step, j)[0] for j in range(8)]
        order = list(range(7, -1, -1))
        nxt = step + 1
        pending = {}
        if self.valid(nxt) and nxt not in self.bbreak:
            for j2 in range(8):
                slot, key = self.bkey_fn(nxt, j2)
                pending[slot] = j2
        k = 0
        for j in order:
            slot, key = self.bkey_fn(step, j)
            em.wait_lg(("b", key))
            for a in range(4):
                cz = self.czero_fn(step) if self.czero_fn else False
                c = "0" if cz else vr(acc(a, j), 4)
                em.e("v_mfma_f32_16x16x32_bf16 %s, %s, %s, %s" % (
                    vr(acc(a, j), 4), vr(ab + 4 * a, 4), vr(BREG + 4 * slot, 4), c))
                if a == 3 and slot in pending:
                    it = self.bread(nxt, pending[slot])
                    if it:
                        self.emit_item(it)
                for it in gaps[k]:
                    self.emit_item(it)
                k += 1


def gating(em, zwrite=True):
    T = BREG
    for j in range(8):
        zreg = T + 32 + 4 * (j % 4)
        for rp in range(2):
            t1 = [T + 0 + a for a in range(4)]
            t2 = [T + 4 + a for a in range(4)]
            d1 = [T + 8 + a for a in range(4)]
            zz = [T + 12 + a for a in range(4)]
            for a in range(4):
                em.e("v_mul_f32 v%d, s%d, v%d" % (t1[a], S_C1, acc(a, j) + rp))
            for a in range(4):
                em.e("v_mul_f32 v%d, s%d, v%d" % (t2[a], S_C2, acc(a, j) + rp + 2))
            for a in range(4):
                em.e("v_min_f32 v%d, s%d, v%d" % (t1[a], S_CL, t1[a]))
            for a in range(4):
                em.e("v_exp_f32 v%d, v%d" % (t2[a], t2[a]))
            for a in range(4):
                em.e("v_exp_f32 v%d, v%d" % (t1[a], t1[a]))
            em.e("s_nop 0")
            for a in range(4):
                em.e("v_add_f32 v%d, 1.0, v%d" % (d1[a], t1[a]))
            for a in range(4):
                em.e("v_fma_f32 v%d, v%d, v%d, v%d" % (d1[a], d1[a], t2[a], d1[a]))
            for a in range(4):
                em.e("v_rcp_f32 v%d, v%d" % (d1[a], d1[a]))
            for a in range(4):
                em.e("v_sub_f32 v%d, 1.0, v%d" % (t1[a], t1[a]))
            for a in range(4):
                em.e("v_mul_f32 v%d, v%d, v%d" % (zz[a], t1[a], d1[a]))
            em.e("v_cvt_pk_bf16_f32 v%d, v%d, v%d" % (zreg + 2 * rp, zz[0], zz[1]))
            em.e("v_cvt_pk_bf16_f32 v%d, v%d, v%d" % (zreg + 2 * rp + 1, zz[2], zz[3]))
        em.lgop("ds_write_b128 v%d, %s offset:%d" % (V_T0, vr(zreg, 4), j * 1024), ("zw", j))


def build(opts):
    em = Em()
    e = em.e
    e("s_cmp_ge_u32 s2, 250")
    e("s_cbranch_scc1 L_end")
    e("s_load_dwordx4 s[4:7], s[0:1], 0")
    e("s_load_dwordx4 s[8:11], s[0:1], 16")
    e("v_and_b32 v0, 0x3ff, v0")
    e("v_lshrrev_b32 v1, 6, v0")
    e("v_and_b32 v%d, 63, v0" % V_LANE)
    e("v_readfirstlane_b32 s%d, v1" % S_WAVE)
    e("s_mov_b32 s%d, 0x05040100" % S_PLO)
    e("s_mov_b32 s%d, 0x07060302" % S_PHI)
    e("s_mov_b32 s%d, 0x%08x" % (S_C1, f32bits(-2.0 * 1.4426950408889634)))
    e("s_mov_b32 s%d, 0x%08x" % (S_C2, f32bits(-1.4426950408889634)))
    e("s_mov_b32 s%d, 0x%08x" % (S_CL, f32bits(30.0)))
    e("s_lshl_b32 s%d, s2, 16" % S_G0)
    e("v_and_b32 v1, 15, v%d" % V_LANE)
    e("v_lshrrev_b32 v2, 4, v%d" % V_LANE)
    e("v_lshrrev_b32 v3, 2, v1")
    e("v_lshlrev_b32 v3, 1, v3")
    e("v_and_b32 v4, 1, v1")
    e("v_add_u32 v3, v3, v4")
    e("v_bfe_u32 v4, v1, 1, 1")
    e("v_lshlrev_b32 v5, 13, v2")
    e("v_lshl_add_u32 v5, v4, 9, v5")
    e("v_lshl_add_u32 v5, v3, 3, v5")
    e("s_lshl_b32 s%d, s%d, 6" % (S_T0, S_WAVE))
    e("v_add_u32 v%d, s%d, v5" % (V_W0, S_T0))
    e("v_add_u32 v%d, 0x1000, v%d" % (V_W1, V_W0))
    e("s_mov_b32 s%d, %d" % (S_T1, PIECE))
    e("v_mul_lo_u32 v5, v1, s%d" % S_T1)
    e("v_lshl_add_u32 v%d, v2, 4, v5" % V_X)
    e("v_lshlrev_b32 v5, 4, v%d" % V_LANE)
    e("v_add_u32 v%d, %d, v5" % (V_Z, ZBASE))
    e("v_lshlrev_b32 v5, 12, v2")
    e("v_lshl_add_u32 v5, v4, 6, v5")
    e("v_lshl_add_u32 v5, v3, 3, v5")
    e("s_and_b32 s%d, s%d, 3" % (S_T0, S_WAVE))
    e("s_lshl_b32 s%d, s%d, 7" % (S_T0, S_T0))
    e("v_add_u32 v%d, s%d, v5" % (V_WO, S_T0))
    e("v_lshlrev_b32 v5, 12, v1")
    e("v_lshl_add_u32 v5, v2, 4, v5")
    e("v_add_u32 v%d, s%d, v5" % (V_OUT, S_T0))
    e("v_lshrrev_b32 v5, 3, v%d" % V_LANE)
    e("v_lshlrev_b32 v5, 9, v5")
    e("v_and_b32 v6, 7, v%d" % V_LANE)
    e("v_lshl_add_u32 v%d, v6, 4, v5" % V_T1)
    e("s_lshl_b32 s%d, s%d, 13" % (S_T0, S_WAVE))
    e("v_add_u32 v%d, s%d, v%d" % (V_T0, S_T0, V_Z))
    e("s_waitcnt lgkmcnt(0)")
    for (sr, p, nbytes) in ((S_X, 4, 16384000), (S_W, 6, 1310720), (S_WO, 8, 131072), (S_OUT, 10, 16384000)):
        e("s_mov_b32 s%d, s%d" % (sr, p))
        e("s_mov_b32 s%d, s%d" % (sr + 1, p + 1))
        e("s_mov_b32 s%d, %d" % (sr + 2, nbytes))
        e("s_mov_b32 s%d, 0x00020000" % (sr + 3))
    e("s_cmp_eq_u32 s2, 0")
    e("s_cselect_b32 s%d, 1, 0" % S_T3)
    e("s_cmp_eq_u32 s2, 125")
    e("s_cselect_b32 s%d, 1, s%d" % (S_T3, S_T3))
    e("s_cmp_eq_u32 s%d, 0" % S_WAVE)
    e("s_cselect_b32 s%d, s%d, 0" % (S_T3, S_T3))
    e("s_mul_i32 s%d, s%d, %d" % (S_T0, S_WAVE, PIECE))
    e("s_lshl_b32 s%d, s%d, 12" % (S_T1, S_WAVE))
    e("s_add_u32 s%d, s%d, s%d" % (S_T1, S_T1, S_G0))
    e("s_sub_u32 s%d, s%d, 4096" % (S_T1, S_T1))
    for r in range(4):
        e("v_mov_b32 v%d, 0" % (BREG + r))
    e("v_lshlrev_b32 v%d, 4, v%d" % (V_T2, V_LANE))
    for cc in range(4):
        e("s_cmp_eq_u32 s%d, 1" % S_T3)
        e("s_cbranch_scc1 L_zf%d" % cc)
        e("s_add_u32 m0, s%d, %d" % (S_T0, cc * CHUNK))
        e("s_add_u32 s%d, s%d, %d" % (S_T2, S_T1, cc * 128))
        em.vmop("buffer_load_dwordx4 v%d, %s, s%d offen lds" % (V_T1, srd(S_X), S_T2), ("x",))
        e("s_branch L_zd%d" % cc)
        em.label("L_zf%d" % cc)
        e("ds_write_b128 v%d, %s offset:%d" % (V_T2, vr(BREG, 4), cc * CHUNK))
        em.label("L_zd%d" % cc)
        e("s_add_u32 m0, s%d, %d" % (S_T0, cc * CHUNK + 8 * PIECE))
        e("s_add_u32 s%d, s%d, %d" % (S_T2, S_T1, cc * 128 + 8 * 4096))
        em.vmop("buffer_load_dwordx4 v%d, %s, s%d offen lds" % (V_T1, srd(S_X), S_T2), ("x",))
        e("s_cmp_lg_u32 s%d, %d" % (S_WAVE, cc + 4))
        e("s_cbranch_scc1 L_np%d" % cc)
        e("s_mov_b32 m0, %d" % (cc * CHUNK + 16 * PIECE))
        e("s_add_u32 s%d, s%d, %d" % (S_T2, S_G0, cc * 128 + 15 * 4096))
        em.vmop("buffer_load_dwordx4 v%d, %s, s%d offen lds" % (V_T1, srd(S_X), S_T2), ("x",))
        em.label("L_np%d" % cc)

    def soff_const(step):
        it, rel = divmod(step, 10)
        kh, tap = divmod(rel, 5)
        return it, tap * 262144 + kh * 32768

    state = {"cur_it": 0}

    def g1_load(step, row, dst):
        v = V_W0 if row < 4 else V_W1
        return "buffer_load_dwordx2 %s, v%d, %s, s%d offen offset:%d" % (
            vr(dst, 2), v, srd(S_W), S_SOFF[step % 2], (row % 4) * 1024)

    def g1_bkey(step, j):
        cs, tap = divmod(step, 5)
        sidx = j - 2 * tap + 8
        return sidx & 7, (cs, sidx)

    def g1_bread(step, j, dst):
        cs, tap = divmod(step, 5)
        sidx = j - 2 * tap + 8
        off = (sidx >> 3) * PIECE + (sidx & 7) * 128 + (cs & 1) * 64
        return "ds_read_b128 %s, v%d offset:%d" % (vr(dst, 4), V_X, off)

    def g1_pre(step):
        out = []
        it, c = soff_const(step + 4)
        cur = step // 10 if step >= 0 else 0
        out.append("s_add_u32 s%d, s%d, %d" % (S_SOFF[(step + 4) % 2], S_IT, c + (it - cur) * 65536))
        if step >= 0 and step % 10 == 9:
            out.append("v_add_u32 v%d, %d, v%d" % (V_X, CHUNK, V_X))
        return out

    p1 = Pipe(em, g1_load, g1_bkey, g1_bread, g1_pre)
    e("s_mov_b32 s%d, 0" % S_IT)
    for g in range(NRAW):
        st, row = divmod(g, 8)
        if row == 0:
            e("s_mov_b32 s%d, %d" % (S_SOFF[st % 2], soff_const(st)[1]))
        p1.emit_item(p1.load(st, row))
    for r in range(128):
        e("v_mov_b32 v%d, 0" % (ACC + r))
    em.wait_vm(("x",))
    e("s_waitcnt lgkmcnt(0)")
    e("s_barrier")
    if opts.get("prio", 1):
        e("s_cmp_ge_u32 s%d, 4" % S_WAVE)
        e("s_cbranch_scc1 L_np")
        e("s_setprio 2")
        em.label("L_np")
    p1.cold_b(0)
    p1.virtual_step(-1)
    e("s_mov_b32 s%d, 0" % S_CNT)
    start = len(em.lines)
    for s in range(0, 10):
        p1.step(s)
    mid = len(em.lines)
    for s in range(10, 20):
        p1.step(s)
    end = len(em.lines)
    b1 = em.lines[start:mid]
    b2 = em.lines[mid:end]
    assert b1 == b2, "loop body not steady"
    em.lines = em.lines[:start]
    em.label("L_loop")
    em.lines += b1
    e("s_add_u32 s%d, s%d, 65536" % (S_IT, S_IT))
    e("s_add_u32 s%d, s%d, 1" % (S_CNT, S_CNT))
    e("s_cmp_lt_u32 s%d, 4" % S_CNT)
    e("s_cbranch_scc1 L_loop")
    em.wait_all()
    e("s_nop 7")
    e("s_cmp_ge_u32 s%d, 4" % S_WAVE)
    e("s_cbranch_scc1 L_low")

    def g2_load(step, row, dst):
        return "buffer_load_dwordx2 %s, v%d, %s, s%d offen offset:%d" % (
            vr(dst, 2), V_WO, srd(S_WO), S_SOFF[step % 2], row * 512)

    def g2_bkey(step, j):
        return j, ("z", step, j)

    def g2_bread(step, j, dst):
        return "ds_read_b128 %s, v%d offset:%d" % (vr(dst, 4), V_Z, (step * 8 + j) * 1024)

    def g2_pre(step):
        if step + 4 < 8:
            return ["s_mov_b32 s%d, %d" % (S_SOFF[(step + 4) % 2], (step + 4) * 16384)]
        return []

    p2 = Pipe(em, g2_load, g2_bkey, g2_bread, g2_pre, czero_fn=lambda s: s == 0, nsteps=8, bbreak=(0, 4))
    for g in range(NRAW):
        st, row = divmod(g, 8)
        if row == 0:
            e("s_mov_b32 s%d, %d" % (S_SOFF[st % 2], st * 16384))
        p2.emit_item(p2.load(st, row))
    gating(em)
    e("s_waitcnt lgkmcnt(0)")
    em.lg = []
    e("s_barrier")
    p2.virtual_step(-1)
    for s in range(4):
        p2.step(s)
    e("s_barrier")
    for s in range(4, 8):
        p2.step(s)
    e("s_nop 7")
    T = BREG
    for j in range(8):
        for half in range(2):
            t = T + 4 * ((2 * j + half) % 16)
            for rr in range(2):
                r = 2 * half + rr
                e("v_cvt_pk_bf16_f32 v%d, v%d, v%d" % (t + 2 * rr, acc(0, j) + r, acc(1, j) + r))
                e("v_cvt_pk_bf16_f32 v%d, v%d, v%d" % (t + 2 * rr + 1, acc(2, j) + r, acc(3, j) + r))
            e("buffer_store_dwordx4 %s, v%d, %s, s%d offen offset:%d" % (
                vr(t, 4), V_OUT, srd(S_OUT), S_G0, j * 512 + half * 64))
    e("s_endpgm")

    em.label("L_low")
    em.vm = []
    em.lg = []
    e("s_barrier")
    gating(em)
    e("s_waitcnt lgkmcnt(0)")
    e("s_barrier")
    em.label("L_end")
    e("s_endpgm")

    txt = HEADER % (LDS_TOTAL, NAME, NAME, NAME) + "\n".join(em.lines) + FOOTER % NAME
    return txt


if __name__ == "__main__":
    out = sys.argv[1] if len(sys.argv) > 1 else "cdna_kernels/%s.s" % NAME
    opts = {}
    for a in sys.argv[2:]:
        k, v = a.split("=")
        opts[k] = int(v)
    open(out, "w").write(build(opts))
    print("wrote", out)
```

```python
import sys
import struct

NAME = "standalone__autoregressive_conv_wavenet__speech"

HEADER = """; Kernarg layout for this problem (48 bytes, ptrs only, base s[0:1]):
; @launch grid=(250,1,1) block=(512,1,1) lds=%d
.amdgcn_target "amdgcn-amd-amdhsa--gfx950"
.text
.globl %s_kernel
.p2align 8
.type %s_kernel,@function
%s_kernel:
"""

FOOTER = """
.section .rodata,"a"
.p2align 6
.amdhsa_kernel %s_kernel
  .amdhsa_next_free_vgpr 256
  .amdhsa_next_free_sgpr 102
  .amdhsa_accum_offset 256
  .amdhsa_group_segment_fixed_size 0
  .amdhsa_kernarg_size 48
  .amdhsa_user_sgpr_count 2
  .amdhsa_user_sgpr_kernarg_segment_ptr 1
  .amdhsa_system_sgpr_workgroup_id_x 1
.end_amdhsa_kernel
"""

PIECE = 1056
CHUNK = 17 * PIECE
XBYTES = 4 * CHUNK
RING0 = XBYTES
NRING = 8
WOB = RING0 + 65536
NWO = 6
FLG = WOB + 4 * NWO * 1024
LDS_TOTAL = FLG + 256
F_X = 0
F_ZH = 32
F_ZL = 64


def f32bits(x):
    return struct.unpack("<I", struct.pack("<f", x))[0]


ACC = 0
BREG = 128
AREG = 160
(V_WD0, V_WD1, V_A0, V_A1, V_X, V_Z, V_ZW, V_WOD, V_OA, V_OUT, V_XD, V_FL, V_F, V_ONE, V_PF, V_FA) = range(224, 240)
V_DUMMY = 240
V_LANE = 244

S_X, S_W, S_WO, S_OUT, S_X0 = 12, 16, 20, 24, 28
S_WAVE = 32
S_IT = 33
S_CNT = 34
S_SOFF = 35
S_T0, S_T1, S_T2, S_T3 = 36, 37, 38, 39
S_G0 = 40
S_RING = 41
S_C1, S_C2, S_CL = 42, 43, 44
S_HOOK = 45
S_XM = 48
S_XS = 49
S_WOR = 56
S_ISL = 57


def acc(a, j):
    return ACC + (j * 4 + a) * 4


def vr(b, n):
    return "v[%d:%d]" % (b, b + n - 1)


def srd(b):
    return "s[%d:%d]" % (b, b + 3)


class Em:
    def __init__(self):
        self.lines = []
        self.vm = []
        self.lg = []
        self.nlab = 0

    def e(self, s):
        self.lines.append("    " + s)

    def label(self, s):
        self.lines.append(s + ":")

    def vmop(self, s, tag):
        self.e(s)
        self.vm.append(tag)

    def lgop(self, s, tag):
        self.e(s)
        self.lg.append(tag)

    def wait_vm(self, tag):
        if tag in self.vm:
            idx = len(self.vm) - 1 - self.vm[::-1].index(tag)
            n = len(self.vm) - 1 - idx
            self.e("s_waitcnt vmcnt(%d)" % min(n, 63))
            self.vm = self.vm[idx + 1:]

    def wait_lg(self, tag):
        if tag in self.lg:
            idx = len(self.lg) - 1 - self.lg[::-1].index(tag)
            n = len(self.lg) - 1 - idx
            self.e("s_waitcnt lgkmcnt(%d)" % min(n, 15))
            self.lg = self.lg[idx + 1:]

    def wait_all(self):
        self.e("s_waitcnt vmcnt(0) lgkmcnt(0)")
        self.vm = []
        self.lg = []

    def item(self, it):
        if it[0] == "op":
            self.e(it[1])
        elif it[0] == "lab":
            self.label(it[1])
        elif it[0] == "vm":
            self.vmop(it[1], it[2])
        elif it[0] == "lg":
            self.lgop(it[1], it[2])
        elif it[0] == "wvm":
            self.wait_vm(it[1])
        elif it[0] == "wlg":
            self.wait_lg(it[1])


def stamp(em, opts, k, real=False):
    if not opts.get("stamp"):
        return
    em.e("%s s[50:51]" % ("s_memrealtime" if real else "s_memtime"))
    em.e("s_waitcnt lgkmcnt(0)")
    em.lg = []
    em.e("s_mov_b32 s%d, s50" % (60 + k))


def stamp_out(em, opts):
    if not opts.get("stamp"):
        return
    stamp(em, opts, 1, real=True)
    e = em.e
    e("s_mov_b32 s52, s46")
    e("s_mov_b32 s53, s47")
    e("s_mov_b32 s54, 0x100000")
    e("s_mov_b32 s55, 0x00020000")
    e("s_lshl_b32 s50, s2, 3")
    e("s_add_u32 s50, s50, s%d" % S_WAVE)
    e("s_lshl_b32 s50, s50, 6")
    e("s_mov_b64 exec, 1")
    e("v_mov_b32 v250, 0")
    for k in range(16):
        e("v_mov_b32 v251, s%d" % (60 + k))
        e("buffer_store_dword v251, v250, s[52:55], s50 offen offset:%d" % (4 * k))


def gate_tile(em, j, zreg):
    T = BREG
    for a01 in range(2):
        f = acc(a01, j)
        g = acc(2 + a01, j)
        t1 = [T + 0 + r for r in range(4)]
        t2 = [T + 4 + r for r in range(4)]
        d1 = [T + 8 + r for r in range(4)]
        zz = [T + 12 + r for r in range(4)]
        for r in range(4):
            em.e("v_mul_f32 v%d, s%d, v%d" % (t1[r], S_C1, f + r))
        for r in range(4):
            em.e("v_mul_f32 v%d, s%d, v%d" % (t2[r], S_C2, g + r))
        for r in range(4):
            em.e("v_min_f32 v%d, s%d, v%d" % (t1[r], S_CL, t1[r]))
        for r in range(4):
            em.e("v_exp_f32 v%d, v%d" % (t2[r], t2[r]))
        for r in range(4):
            em.e("v_exp_f32 v%d, v%d" % (t1[r], t1[r]))
        em.e("s_nop 0")
        for r in range(4):
            em.e("v_add_f32 v%d, 1.0, v%d" % (d1[r], t1[r]))
        for r in range(4):
            em.e("v_fma_f32 v%d, v%d, v%d, v%d" % (d1[r], d1[r], t2[r], d1[r]))
        for r in range(4):
            em.e("v_rcp_f32 v%d, v%d" % (d1[r], d1[r]))
        for r in range(4):
            em.e("v_sub_f32 v%d, 1.0, v%d" % (t1[r], t1[r]))
        for r in range(4):
            em.e("v_mul_f32 v%d, v%d, v%d" % (zz[r], t1[r], d1[r]))
        em.e("v_cvt_pk_bf16_f32 v%d, v%d, v%d" % (zreg + 2 * a01, zz[0], zz[1]))
        em.e("v_cvt_pk_bf16_f32 v%d, v%d, v%d" % (zreg + 2 * a01 + 1, zz[2], zz[3]))


def build(opts):
    em = Em()
    e = em.e
    GR = [int(v) for v in str(opts.get("gr", "0,8,16,24")).split(",")]
    GD = [int(v) for v in str(opts.get("gd", "6,14,22,30")).split(",")]
    XL = int(opts.get("xl", 1))
    e("s_cmp_ge_u32 s2, 250")
    e("s_cbranch_scc1 L_end")
    e("s_load_dwordx4 s[4:7], s[0:1], 0")
    e("s_load_dwordx4 s[8:11], s[0:1], 16")
    if opts.get("stamp"):
        e("s_load_dwordx2 s[46:47], s[0:1], 40")
        for k in range(16):
            e("s_mov_b32 s%d, 0" % (60 + k))
        e("s_memrealtime s[58:59]")
        e("s_memtime s[50:51]")
    e("v_and_b32 v0, 0x3ff, v0")
    e("v_lshrrev_b32 v1, 6, v0")
    e("v_and_b32 v%d, 63, v0" % V_LANE)
    e("v_readfirstlane_b32 s%d, v1" % S_WAVE)
    L = V_LANE
    e("v_lshrrev_b32 v5, 3, v%d" % L)
    e("v_lshlrev_b32 v5, 9, v5")
    e("v_and_b32 v6, 7, v%d" % L)
    e("v_lshl_add_u32 v%d, v6, 4, v5" % V_XD)
    e("s_lshl_b32 s%d, s2, 16" % S_G0)
    e("s_cmp_eq_u32 s2, 0")
    e("s_cselect_b32 s%d, 1, 0" % S_T3)
    e("s_cmp_eq_u32 s2, 125")
    e("s_cselect_b32 s%d, 1, s%d" % (S_T3, S_T3))
    e("s_and_b32 s%d, s%d, 3" % (S_T2, S_WAVE))
    e("s_cmp_eq_u32 s%d, 0" % S_T2)
    e("s_cselect_b32 s%d, s%d, 0" % (S_T3, S_T3))
    e("s_mul_i32 s%d, s%d, %d" % (S_T0, S_WAVE, PIECE))
    e("s_lshl_b32 s%d, s%d, 12" % (S_T1, S_WAVE))
    e("s_add_u32 s%d, s%d, s%d" % (S_T1, S_T1, S_G0))
    e("s_sub_u32 s%d, s%d, 4096" % (S_T1, S_T1))
    e("s_lshr_b32 s%d, s%d, 2" % (S_ISL, S_WAVE))
    e("v_lshrrev_b32 v1, 4, v%d" % L)
    e("v_bfe_u32 v2, v%d, 2, 2" % L)
    e("v_and_b32 v3, 3, v%d" % L)
    e("v_and_b32 v4, 1, v1")
    e("v_lshlrev_b32 v5, 13, v1")
    e("v_lshl_add_u32 v5, v2, 10, v5")
    e("v_lshlrev_b32 v6, 1, v4")
    e("v_xor_b32 v6, v6, v3")
    e("v_lshl_add_u32 v5, v6, 4, v5")
    e("s_lshl_b32 s%d, s%d, 6" % (S_T2, S_WAVE))
    e("v_add_u32 v%d, s%d, v5" % (V_WD0, S_T2))
    e("v_add_u32 v%d, 0x1000, v%d" % (V_WD1, V_WD0))
    e("s_lshl_b32 s%d, s%d, 13" % (S_RING, S_WAVE))
    e("s_add_u32 s%d, s%d, %d" % (S_RING, S_RING, RING0))
    e("s_waitcnt lgkmcnt(0)")
    if opts.get("stamp"):
        e("s_mov_b32 s60, s58")
        e("s_mov_b32 s62, s50")
    for (sr, p, nbytes) in ((S_X, 4, 16384000), (S_X0, 4, 16384000), (S_W, 6, 1310720), (S_WO, 8, 131072), (S_OUT, 10, 16384000)):
        e("s_mov_b32 s%d, s%d" % (sr, p))
        e("s_mov_b32 s%d, s%d" % (sr + 1, p + 1))
        e("s_mov_b32 s%d, %d" % (sr + 2, nbytes))
        e("s_mov_b32 s%d, 0x00020000" % (sr + 3))
    e("s_cmp_eq_u32 s%d, 1" % S_T3)
    e("s_cselect_b32 s%d, 0, s%d" % (S_X0 + 2, S_X0 + 2))
    e("s_mov_b32 m0, s%d" % S_T0)
    e("s_cmp_eq_u32 s%d, 4" % S_WAVE)
    e("s_cbranch_scc1 L_c0w4")
    em.vmop("buffer_load_dwordx4 v%d, %s, s%d offen lds" % (V_XD, srd(S_X0), S_T1), ("x",))
    e("s_branch L_c0b")
    em.label("L_c0w4")
    e("buffer_load_dwordx4 v%d, %s, s%d offen lds" % (V_XD, srd(S_X), S_T1))
    em.label("L_c0b")
    e("s_add_u32 m0, s%d, %d" % (S_T0, 8 * PIECE))
    e("s_add_u32 s%d, s%d, %d" % (S_T2, S_T1, 8 * 4096))
    em.vmop("buffer_load_dwordx4 v%d, %s, s%d offen lds" % (V_XD, srd(S_X), S_T2), ("x",))
    e("s_cmp_lg_u32 s%d, 7" % S_WAVE)
    e("s_cbranch_scc1 L_c0c")
    e("s_mov_b32 m0, %d" % (16 * PIECE))
    e("s_add_u32 s%d, s%d, %d" % (S_T2, S_G0, 15 * 4096))
    e("buffer_load_dwordx4 v%d, %s, s%d offen lds" % (V_XD, srd(S_X), S_T2))
    em.label("L_c0c")

    def soff_const(step):
        it, rel = divmod(step, 10)
        kh, tap = divmod(rel, 5)
        return it, tap * 262144 + kh * 32768

    def dma_items(step, u):
        fg, h = u >> 1, u & 1
        slot = (4 * step + u) % NRING
        m0 = ("op", "s_add_u32 m0, s%d, %d" % (S_RING, slot * 1024 - fg * 512)) if slot * 1024 - fg * 512 >= 0 else \
             ("op", "s_sub_u32 m0, s%d, %d" % (S_RING, fg * 512 - slot * 1024))
        d = ("vm", "buffer_load_dwordx4 v%d, %s, s%d offen offset:%d lds" % (
            V_WD1 if h else V_WD0, srd(S_W), S_SOFF, fg * 512), ("u", step, u))
        return m0, d

    def tr_items(step, u):
        fg, h = u >> 1, u & 1
        slot = (4 * step + u) % NRING
        ab = AREG + 16 * (step % 2)
        out = [("wvm", ("u", step, u))]
        for a01 in range(2):
            d = ab + 4 * (2 * fg + a01) + 2 * h
            out.append(("lg", "ds_read_b64_tr_b16 %s, v%d offset:%d" % (vr(d, 2), V_A1 if a01 else V_A0, slot * 1024),
                        ("a", step, u, a01)))
        return out

    for st in range(2):
        e("s_mov_b32 s%d, %d" % (S_SOFF, soff_const(st)[1]))
        for u in range(4):
            m0, d = dma_items(st, u)
            em.item(m0)
            e("s_nop 0")
            em.item(d)
    e("s_and_b32 s%d, s%d, 3" % (S_T2, S_WAVE))
    e("s_mul_i32 s%d, s%d, %d" % (S_XM, S_T2, PIECE))
    e("s_lshl_b32 s%d, s%d, 12" % (S_XS, S_T2))
    e("s_add_u32 s%d, s%d, s%d" % (S_XS, S_XS, S_G0))
    e("s_sub_u32 s%d, s%d, 4096" % (S_XS, S_XS))

    def xchunk_items(c, lab):
        out = []
        for i in range(4):
            out.append(("op", "s_add_u32 m0, s%d, %d" % (S_XM, c * CHUNK + 4 * i * PIECE)))
            out.append(("op", "s_add_u32 s%d, s%d, %d" % (S_T2, S_XS, c * 128 + 4 * i * 4096)))
            out.append(("op", "buffer_load_dwordx4 v%d, %s, s%d offen lds" % (V_XD, srd(S_X0 if i == 0 else S_X), S_T2)))
        out.append(("op", "s_cmp_lg_u32 s%d, %d" % (S_WAVE, 4 + c)))
        out.append(("op", "s_cbranch_scc1 %s" % lab))
        out.append(("op", "s_mov_b32 m0, %d" % (c * CHUNK + 16 * PIECE)))
        out.append(("op", "s_add_u32 s%d, s%d, %d" % (S_T2, S_G0, c * 128 + 15 * 4096)))
        out.append(("op", "buffer_load_dwordx4 v%d, %s, s%d offen lds" % (V_XD, srd(S_X), S_T2)))
        out.append(("lab", lab))
        return out

    e("s_cmp_eq_u32 s%d, 0" % S_ISL)
    e("s_cbranch_scc1 L_hpro")
    NPF = 11
    if opts.get("pf", 1):
        e("v_lshlrev_b32 v%d, 4, v%d" % (V_PF, L))
        e("s_lshr_b32 s%d, s2, 3" % S_T0)
        e("s_lshl_b32 s%d, s%d, 2" % (S_T0, S_T0))
        e("s_and_b32 s%d, s%d, 3" % (S_T2, S_WAVE))
        e("s_add_u32 s%d, s%d, s%d" % (S_T0, S_T0, S_T2))
        e("s_mul_i32 s%d, s%d, %d" % (S_T1, S_T0, NPF * 1024))
        for i in range(NPF):
            if i % 4 == 0 and i:
                e("s_add_u32 s%d, s%d, 4096" % (S_T1, S_T1))
            e("buffer_load_dwordx4 %s, v%d, %s, s%d offen offset:%d" % (vr(V_DUMMY, 4), V_PF, srd(S_W), S_T1, (i % 4) * 1024))
        e("s_lshl_b32 s%d, s%d, 11" % (S_T1, S_T0))
        for i in range(2):
            e("buffer_load_dwordx4 %s, v%d, %s, s%d offen offset:%d" % (vr(V_DUMMY, 4), V_PF, srd(S_WO), S_T1, i * 1024))
        npf = NPF + 2
    else:
        npf = 0
    for it in xchunk_items(1, "L_c1x"):
        em.item(it)
    em.label("L_hpro")
    e("s_mov_b32 s%d, 0x%08x" % (S_C1, f32bits(-2.0 * 1.4426950408889634)))
    e("s_mov_b32 s%d, 0x%08x" % (S_C2, f32bits(-1.4426950408889634)))
    e("s_mov_b32 s%d, 0x%08x" % (S_CL, f32bits(30.0)))
    e("v_lshlrev_b32 v5, 8, v1")
    e("v_lshl_add_u32 v5, v2, 6, v5")
    e("v_lshl_add_u32 v6, v4, 5, v5")
    e("v_lshl_add_u32 v6, v3, 3, v6")
    e("v_add_u32 v%d, s%d, v6" % (V_A0, S_RING))
    e("v_xor_b32 v6, 32, v6")
    e("v_add_u32 v%d, s%d, v6" % (V_A1, S_RING))
    e("s_and_b32 s%d, s%d, 3" % (S_T2, S_WAVE))
    e("s_mul_i32 s%d, s%d, %d" % (S_WOR, S_T2, NWO * 1024))
    e("s_add_u32 s%d, s%d, %d" % (S_WOR, S_WOR, WOB))
    e("v_lshl_add_u32 v6, v3, 4, v5")
    e("v_add_u32 v%d, s%d, v6" % (V_OA, S_WOR))
    e("v_lshrrev_b32 v6, 2, v%d" % L)
    e("v_lshlrev_b32 v6, 9, v6")
    e("v_lshl_add_u32 v6, v3, 4, v6")
    e("s_lshl_b32 s%d, s%d, 7" % (S_T2, S_T2))
    e("v_add_u32 v%d, s%d, v6" % (V_WOD, S_T2))
    e("v_and_b32 v7, 15, v%d" % L)
    e("s_mov_b32 s%d, %d" % (S_T1, PIECE))
    e("v_mul_lo_u32 v5, v7, s%d" % S_T1)
    e("v_lshl_add_u32 v%d, v1, 4, v5" % V_X)
    e("v_lshlrev_b32 v5, 12, v7")
    e("v_lshl_add_u32 v5, v1, 4, v5")
    e("v_add_u32 v%d, s%d, v5" % (V_OUT, S_T2))
    e("v_lshlrev_b32 v5, 4, v%d" % L)
    e("v_add_u32 v%d, %d, v5" % (V_Z, RING0))
    e("v_add_u32 v%d, s%d, v5" % (V_ZW, S_RING))
    e("v_mov_b32 v%d, %d" % (V_FA, FLG))
    e("v_mov_b32 v%d, %d" % (V_FL, FLG + F_X + 4))
    e("v_mov_b32 v%d, 1" % V_ONE)
    e("s_cmp_lg_u32 s%d, 0" % S_WAVE)
    e("s_cbranch_scc1 L_nofl")
    e("v_lshlrev_b32 v5, 2, v%d" % L)
    e("v_add_u32 v5, %d, v5" % FLG)
    e("v_cmp_eq_u32 vcc, 4, v%d" % L)
    e("v_mov_b32 v6, 0")
    e("s_nop 0")
    e("v_cndmask_b32 v6, v6, v%d, vcc" % L)
    e("ds_write_b32 v5, v6")
    em.label("L_nofl")
    for r in range(128):
        e("v_mov_b32 v%d, 0" % (ACC + r))
    e("s_mov_b32 s%d, s%d" % (S_HOOK, S_ISL))
    e("s_mov_b32 s%d, 0" % S_IT)
    e("s_mov_b32 s%d, 0" % S_CNT)
    e("s_cmp_eq_u32 s%d, 0" % S_ISL)
    e("s_cbranch_scc1 L_hw")
    e("s_waitcnt vmcnt(%d) lgkmcnt(0)" % (8 + npf + 4))
    if XL > 0:
        e("s_setprio 3")
    else:
        e("s_setprio 1")
    e("s_branch L_bar")
    em.label("L_hw")
    e("s_waitcnt vmcnt(8) lgkmcnt(0)")
    e("s_setprio 2")
    em.label("L_bar")
    em.vm = [t for t in em.vm if t != ("x",)]
    e("s_barrier")
    stamp(em, opts, 3)

    slotkey = [None] * 8

    def bkey(step, j):
        cs, tap = divmod(step, 5)
        sidx = j - 2 * tap + 8
        return sidx & 7, (cs, sidx)

    def bread(step, j):
        slot, key = bkey(step, j)
        if slotkey[slot] == key:
            return None
        slotkey[slot] = key
        cs, tap = divmod(step, 5)
        sidx = j - 2 * tap + 8
        off = (sidx >> 3) * PIECE + (sidx & 7) * 128 + (cs & 1) * 64
        return ("lg", "ds_read_b128 %s, v%d offset:%d" % (vr(BREG + 4 * slot, 4), V_X, off), ("b", key))

    def soff_item(step, cur):
        it, c = soff_const(step)
        return ("op", "s_add_u32 s%d, s%d, %d" % (S_SOFF, S_IT, c + (it - cur) * 65536))

    for j in range(7, -1, -1):
        em.item(bread(0, j))
    em.item(soff_item(2, 0))
    for u in range(4):
        for it in tr_items(0, u):
            em.item(it)
    for u in range(4):
        m0, d = dma_items(2, u)
        em.item(m0)
        em.wait_lg(("a", 0, u, 1))
        e("s_nop 0")
        em.item(d)
    stamp(em, opts, 4)

    def hook(items, lab):
        return [("op", "s_cmp_eq_u32 s%d, 0" % S_HOOK), ("op", "s_cbranch_scc1 %s" % lab)] + items + [("lab", lab)]

    def signal(c):
        return [("op", "ds_add_u32 v%d, v%d offset:%d" % (V_FA, V_ONE, F_X + 4 * c))]

    def gstep(step):
        rel = step % 10
        cur = step // 10
        ab = AREG + 16 * (step % 2)
        gaps = [[] for _ in range(33)]
        gaps[0].append(soff_item(step + 3, cur))
        if rel == 7:
            gaps[0].append(("op", "s_cmp_eq_u32 s%d, 3" % S_CNT))
            gaps[0].append(("op", "s_cselect_b32 s%d, 0, s%d" % (S_W + 2, S_W + 2)))
        for u in range(4):
            for it in tr_items(step + 1, u):
                gaps[GR[u]].append(it)
            m0, d = dma_items(step + 3, u)
            gaps[GD[u] - 1].append(m0)
            gaps[GD[u]].append(("wlg", ("a", step + 1, u, 1)))
            gaps[GD[u]].append(d)
        if rel in (2, 5, 8):
            c = {2: 1, 5: 2, 8: 3}[rel]
            its = [("op", "s_mov_b64 exec, 1")] + signal(c) + [("op", "s_mov_b64 exec, -1")]
            if c < 3:
                its += xchunk_items(c + 1, "L_hx%d" % rel)
            gaps[2] += hook(its, "L_hk%d" % rel)
        if rel == 8:
            gaps[10].append(("lg", "ds_read_b32 v%d, v%d" % (V_F, V_FL), ("fl", step)))
        pre = []
        if rel == 9:
            pre = [("wlg", ("fl", step - 1)),
                   ("op", "v_readfirstlane_b32 s%d, v%d" % (S_T0, V_F)),
                   ("op", "v_add_u32 v%d, %d, v%d" % (V_X, CHUNK, V_X)),
                   ("op", "s_cmp_eq_u32 s%d, 4" % S_T0),
                   ("op", "s_cbranch_scc1 L_pok"),
                   ("lab", "L_pspin"),
                   ("op", "ds_read_b32 v%d, v%d" % (V_F, V_FL)),
                   ("op", "s_waitcnt lgkmcnt(0)"),
                   ("op", "v_readfirstlane_b32 s%d, v%d" % (S_T0, V_F)),
                   ("op", "s_cmp_eq_u32 s%d, 4" % S_T0),
                   ("op", "s_cbranch_scc0 L_pspin"),
                   ("lab", "L_pok"),
                   ("op", "v_add_u32 v%d, 4, v%d" % (V_FL, V_FL))]
        for it in pre:
            em.item(it)
        nxt = step + 1
        pending = {}
        for j2 in range(8):
            slot, key = bkey(nxt, j2)
            pending[slot] = j2
        k = 0
        for j in range(7, -1, -1):
            slot, key = bkey(step, j)
            em.wait_lg(("b", key))
            for a in range(4):
                em.wait_lg(("a", step, 2 * (a >> 1) + 1, a & 1))
                em.e("v_mfma_f32_16x16x32_bf16 %s, %s, %s, %s" % (
                    vr(acc(a, j), 4), vr(ab + 4 * a, 4), vr(BREG + 4 * slot, 4), vr(acc(a, j), 4)))
                if a == 3 and slot in pending:
                    it = bread(nxt, pending[slot])
                    if it:
                        em.item(it)
                for it in gaps[k]:
                    em.item(it)
                k += 1

    start = len(em.lines)
    for s in range(0, 10):
        gstep(s)
    mid = len(em.lines)
    for s in range(10, 20):
        gstep(s)
    end = len(em.lines)
    b1 = em.lines[start:mid]
    b2 = em.lines[mid:end]
    if b1 != b2:
        for x1, x2 in zip(b1, b2):
            if x1 != x2:
                print("DIFF", x1, "|", x2)
    assert b1 == b2, "loop body not steady"
    em.lines = em.lines[:start]
    if opts.get("nodma"):
        b1 = [l for l in b1 if not ("s[16:19]" in l) and "vmcnt" not in l]
    if opts.get("nomfma"):
        b1 = [l for l in b1 if "v_mfma" not in l]
    em.label("L_loop")
    em.lines += b1
    e("s_add_u32 s%d, s%d, 65536" % (S_IT, S_IT))
    e("s_add_u32 s%d, s%d, 1" % (S_CNT, S_CNT))
    e("s_mov_b32 s%d, 0" % S_HOOK)
    if XL > 0:
        e("s_mul_i32 s%d, s%d, s%d" % (S_T0, S_CNT, S_ISL))
        e("s_cmp_lg_u32 s%d, %d" % (S_T0, XL))
        e("s_cbranch_scc1 L_nsp")
        e("s_setprio 1")
        em.label("L_nsp")
    e("s_cmp_lt_u32 s%d, 4" % S_CNT)
    e("s_cbranch_scc1 L_loop")
    e("s_waitcnt lgkmcnt(0)")
    em.lg = []
    stamp(em, opts, 5)
    e("s_cmp_lg_u32 s%d, 0" % S_ISL)
    e("s_cbranch_scc1 L_low")
    vm_after_loop = list(em.vm)

    e("s_setprio 0")

    def wo_dma(U):
        ks, u = divmod(U, 4)
        ch, h = u >> 1, u & 1
        slot = U % NWO
        off = slot * 1024 - ch * 64
        m0 = ("op", "s_add_u32 m0, s%d, %d" % (S_WOR, off)) if off >= 0 else ("op", "s_sub_u32 m0, s%d, %d" % (S_WOR, -off))
        so = ("op", "s_mov_b32 s%d, %d" % (S_SOFF, (32 * ks + 16 * h) * 512))
        d = ("vm", "buffer_load_dwordx4 v%d, %s, s%d offen offset:%d lds" % (V_WOD, srd(S_WO), S_SOFF, ch * 64), ("o", U))
        return [m0, so, d]

    def wo_tr(U):
        ks, u = divmod(U, 4)
        ch, h = u >> 1, u & 1
        slot = U % NWO
        ab = AREG + 16 * (ks % 4)
        out = [("wvm", ("o", U))]
        for a1 in range(2):
            d = ab + 4 * (2 * ch + a1) + 2 * h
            out.append(("lg", "ds_read_b64_tr_b16 %s, v%d offset:%d" % (vr(d, 2), V_OA, slot * 1024 + a1 * 8), ("oa", U, a1)))
        return out

    for U in range(NWO):
        for it in wo_dma(U):
            em.item(it)
    nextdma = NWO
    for t, j in enumerate(range(7, -1, -1)):
        zreg = BREG + 16 + 4 * (t % 4)
        gate_tile(em, j, zreg)
        if t == 0:
            em.wait_vm(vm_after_loop[-1])
        em.lgop("ds_write_b128 v%d, %s offset:%d" % (V_ZW, vr(zreg, 4), j * 1024), ("zw", j))
        if t >= 1:
            em.wait_lg(("oa", 2 * t - 1, 1))
            for U in (nextdma, nextdma + 1):
                for it in wo_dma(U):
                    em.item(it)
            nextdma += 2
        for U in (2 * t, 2 * t + 1):
            for it in wo_tr(U):
                em.item(it)
    e("s_mov_b64 exec, 1")
    em.lgop("ds_add_u32 v%d, v%d offset:%d" % (V_FA, V_ONE, F_ZH), ("zf",))
    e("s_mov_b64 exec, -1")
    em.wait_lg(("oa", 15, 1))
    for U in (nextdma, nextdma + 1):
        for it in wo_dma(U):
            em.item(it)
    nextdma += 2
    stamp(em, opts, 6)
    em.label("L_zhs")
    e("ds_read_b32 v%d, v%d offset:%d" % (V_F, V_FA, F_ZH))
    e("s_waitcnt lgkmcnt(0)")
    em.lg = []
    e("v_readfirstlane_b32 s%d, v%d" % (S_T0, V_F))
    e("s_cmp_eq_u32 s%d, 4" % S_T0)
    e("s_cbranch_scc0 L_zhs")
    e("s_setprio 2")
    stamp(em, opts, 7)

    def zread(ks, j, slot):
        return ("lg", "ds_read_b128 %s, v%d offset:%d" % (vr(BREG + 4 * slot, 4), V_Z, ks * 8192 + j * 1024), ("z", ks, j))

    for j in range(7, -1, -1):
        em.item(zread(0, j, j))
    for ks in range(4):
        ab = AREG + 16 * ks
        gaps = [[] for _ in range(33)]
        if ks >= 1:
            for u in range(4):
                U = 4 * (ks + 3) + u
                for it in wo_tr(U):
                    gaps[8 * u].append(it)
                if nextdma < 32:
                    gaps[8 * u + 6].append(("wlg", ("oa", U, 1)))
                    for it in wo_dma(nextdma):
                        gaps[8 * u + 6].append(it)
                    nextdma += 1
        k = 0
        for j in range(7, -1, -1):
            em.wait_lg(("z", ks, j))
            for a in range(4):
                c = "0" if ks == 0 else vr(acc(a, j), 4)
                e("v_mfma_f32_16x16x32_bf16 %s, %s, %s, %s" % (vr(acc(a, j), 4), vr(ab + 4 * a, 4), vr(BREG + 4 * j, 4), c))
                if a == 3 and ks < 3:
                    em.item(zread(ks + 1, j, j))
                for it in gaps[k]:
                    em.item(it)
                k += 1
    assert nextdma == 32, nextdma
    for u in range(4):
        for it in wo_tr(28 + u):
            em.item(it)
    stamp(em, opts, 8)

    def epi(j, t):
        for ch in range(2):
            tt = V_DUMMY + 4 * ((2 * t + ch) % 4) if False else BREG + 0
            tt = 240 + 4 * ((2 * t + ch) % 4)
            for a1 in range(2):
                aa = acc(2 * ch + a1, j)
                e("v_cvt_pk_bf16_f32 v%d, v%d, v%d" % (tt + 2 * a1, aa, aa + 1))
                e("v_cvt_pk_bf16_f32 v%d, v%d, v%d" % (tt + 2 * a1 + 1, aa + 2, aa + 3))
            e("buffer_store_dwordx4 %s, v%d, %s, s%d offen offset:%d" % (
                vr(tt, 4), V_OUT, srd(S_OUT), S_G0, j * 512 + ch * 64))

    prev = None
    for t, j in enumerate(range(7, -1, -1)):
        sb = 4 * (t % 2)
        em.label("L_zl%d" % j)
        e("ds_read_b32 v%d, v%d offset:%d" % (V_F, V_FA, F_ZL + 4 * j))
        for k4 in range(4):
            e(zread(4 + k4, j, sb + k4)[1])
        if prev is not None:
            pass
        e("s_waitcnt lgkmcnt(0)")
        em.lg = []
        e("v_readfirstlane_b32 s%d, v%d" % (S_T0, V_F))
        e("s_cmp_eq_u32 s%d, 4" % S_T0)
        e("s_cbranch_scc0 L_zl%d" % j)
        for k4 in range(4):
            ab = AREG + 16 * k4
            for a in range(4):
                e("v_mfma_f32_16x16x32_bf16 %s, %s, %s, %s" % (vr(acc(a, j), 4), vr(ab + 4 * a, 4), vr(BREG + 4 * (sb + k4), 4), vr(acc(a, j), 4)))
        e("s_nop 7")
        epi(j, t)
    stamp(em, opts, 9)
    if opts.get("stamp"):
        e("s_waitcnt vmcnt(0)")
    stamp(em, opts, 10)
    stamp_out(em, opts)
    e("s_endpgm")

    em.label("L_low")
    em.vm = []
    em.lg = []
    e("s_setprio 3")
    for t, j in enumerate(range(7, -1, -1)):
        zreg = BREG + 16 + 4 * (t % 4)
        gate_tile(em, j, zreg)
        if t == 0:
            e("s_waitcnt vmcnt(0)")
        e("ds_write_b128 v%d, %s offset:%d" % (V_ZW, vr(zreg, 4), j * 1024))
        e("s_mov_b64 exec, 1")
        e("ds_add_u32 v%d, v%d offset:%d" % (V_FA, V_ONE, F_ZL + 4 * j))
        e("s_mov_b64 exec, -1")
    e("s_waitcnt lgkmcnt(0)")
    stamp(em, opts, 6)
    stamp_out(em, opts)
    em.label("L_end")
    e("s_endpgm")

    txt = HEADER % (LDS_TOTAL, NAME, NAME, NAME) + "\n".join(em.lines) + FOOTER % NAME
    return txt


if __name__ == "__main__":
    out = sys.argv[1] if len(sys.argv) > 1 else "cdna_kernels/%s.s" % NAME
    opts = {}
    for a in sys.argv[2:]:
        k, v = a.split("=")
        opts[k] = int(v) if v.isdigit() else v
    open(out, "w").write(build(opts))
    print("wrote", out)
```

```python
import sys
import struct

NAME = "standalone__autoregressive_conv_wavenet__speech"

HEADER = """; Kernarg layout for this problem (48 bytes, ptrs only, base s[0:1]):
; @launch grid=(250,1,1) block=(512,1,1) lds=%d
.amdgcn_target "amdgcn-amd-amdhsa--gfx950"
.text
.globl %s_kernel
.p2align 8
.type %s_kernel,@function
%s_kernel:
"""

FOOTER = """
.section .rodata,"a"
.p2align 6
.amdhsa_kernel %s_kernel
  .amdhsa_next_free_vgpr 256
  .amdhsa_next_free_sgpr 102
  .amdhsa_accum_offset 256
  .amdhsa_group_segment_fixed_size 0
  .amdhsa_kernarg_size 48
  .amdhsa_user_sgpr_count 2
  .amdhsa_user_sgpr_kernarg_segment_ptr 1
  .amdhsa_system_sgpr_workgroup_id_x 1
.end_amdhsa_kernel
"""

PIECE = 1056
CHUNK = 17 * PIECE
XBYTES = 4 * CHUNK
RING0 = XBYTES
NRING = 8
WOB = RING0 + 65536
NWO = 6
FLG = WOB + 4 * NWO * 1024
LDS_TOTAL = FLG + 256
F_X = 0
F_ZH = 32
F_ZL = 64


def f32bits(x):
    return struct.unpack("<I", struct.pack("<f", x))[0]


ACC = 0
BREG = 128
AREG = 160
(V_WD0, V_WD1, V_A0, V_A1, V_X, V_Z, V_ZW, V_WOD, V_OA, V_OUT, V_XD, V_FL, V_F, V_ONE, V_PF, V_FA) = range(224, 240)
V_DUMMY = 240
V_LANE = 244
V_PFA, V_PFB, V_PFC, V_SG = 245, 246, 247, 248

S_X, S_W, S_WO, S_OUT, S_X0 = 12, 16, 20, 24, 28
S_WAVE = 32
S_IT = 33
S_CNT = 34
S_SOFF = 35
S_T0, S_T1, S_T2, S_T3 = 36, 37, 38, 39
S_G0 = 40
S_RING = 41
S_C1, S_C2, S_CL = 42, 43, 44
S_HOOK = 45
S_XM = 48
S_XS = 49
S_WOR = 56
S_ISL = 57
S_X16M, S_X16S, S_XW = 90, 91, 92
S_I, S_P0, S_P1, S_P2, S_PD = 93, 94, 95, 96, 97


def acc(a, j):
    return ACC + (j * 4 + a) * 4


def vr(b, n):
    return "v[%d:%d]" % (b, b + n - 1)


def srd(b):
    return "s[%d:%d]" % (b, b + 3)


class Em:
    def __init__(self):
        self.lines = []
        self.vm = []
        self.lg = []
        self.nlab = 0

    def e(self, s):
        self.lines.append("    " + s)

    def label(self, s):
        self.lines.append(s + ":")

    def vmop(self, s, tag):
        self.e(s)
        self.vm.append(tag)

    def lgop(self, s, tag):
        self.e(s)
        self.lg.append(tag)

    def wait_vm(self, tag):
        if tag in self.vm:
            idx = len(self.vm) - 1 - self.vm[::-1].index(tag)
            n = len(self.vm) - 1 - idx
            self.e("s_waitcnt vmcnt(%d)" % min(n, 63))
            self.vm = self.vm[idx + 1:]

    def wait_lg(self, tag):
        if tag in self.lg:
            idx = len(self.lg) - 1 - self.lg[::-1].index(tag)
            n = len(self.lg) - 1 - idx
            self.e("s_waitcnt lgkmcnt(%d)" % min(n, 15))
            self.lg = self.lg[idx + 1:]

    def wait_all(self):
        self.e("s_waitcnt vmcnt(0) lgkmcnt(0)")
        self.vm = []
        self.lg = []

    def item(self, it):
        if it[0] == "op":
            self.e(it[1])
        elif it[0] == "lab":
            self.label(it[1])
        elif it[0] == "vm":
            self.vmop(it[1], it[2])
        elif it[0] == "lg":
            self.lgop(it[1], it[2])
        elif it[0] == "wvm":
            self.wait_vm(it[1])
        elif it[0] == "wlg":
            self.wait_lg(it[1])


def stamp(em, opts, k, real=False):
    if not opts.get("stamp"):
        return
    em.e("%s s[50:51]" % ("s_memrealtime" if real else "s_memtime"))
    em.e("s_waitcnt lgkmcnt(0)")
    em.lg = []
    em.e("s_mov_b32 s%d, s50" % (60 + k))


def pstamp(em, opts, k):
    if opts.get("stamp") != 1:
        return
    em.e("s_memtime s[%d:%d]" % (80 + 2 * (k - 11), 81 + 2 * (k - 11)))


def pcollect(em, opts):
    if opts.get("stamp") != 1:
        return
    for k in range(11, 16):
        em.e("s_mov_b32 s%d, s%d" % (60 + k, 80 + 2 * (k - 11)))


def stamp_out(em, opts):
    if not opts.get("stamp"):
        return
    stamp(em, opts, 1, real=True)
    e = em.e
    e("s_mov_b32 s52, s46")
    e("s_mov_b32 s53, s47")
    e("s_mov_b32 s54, 0x100000")
    e("s_mov_b32 s55, 0x00020000")
    e("s_lshl_b32 s50, s2, 3")
    e("s_add_u32 s50, s50, s%d" % S_WAVE)
    e("s_lshl_b32 s50, s50, 6")
    e("s_mov_b64 exec, 1")
    e("v_mov_b32 v250, 0")
    for k in range(16):
        e("v_mov_b32 v251, s%d" % (60 + k))
        e("buffer_store_dword v251, v250, s[52:55], s50 offen offset:%d" % (4 * k))


def gate_tile(em, j, zreg):
    T = BREG
    for a01 in range(2):
        f = acc(a01, j)
        g = acc(2 + a01, j)
        t1 = [T + 0 + r for r in range(4)]
        t2 = [T + 4 + r for r in range(4)]
        d1 = [T + 8 + r for r in range(4)]
        zz = [T + 12 + r for r in range(4)]
        for r in range(4):
            em.e("v_mul_f32 v%d, s%d, v%d" % (t1[r], S_C1, f + r))
        for r in range(4):
            em.e("v_mul_f32 v%d, s%d, v%d" % (t2[r], S_C2, g + r))
        for r in range(4):
            em.e("v_min_f32 v%d, s%d, v%d" % (t1[r], S_CL, t1[r]))
        for r in range(4):
            em.e("v_exp_f32 v%d, v%d" % (t2[r], t2[r]))
        for r in range(4):
            em.e("v_exp_f32 v%d, v%d" % (t1[r], t1[r]))
        em.e("s_nop 0")
        for r in range(4):
            em.e("v_add_f32 v%d, 1.0, v%d" % (d1[r], t1[r]))
        for r in range(4):
            em.e("v_fma_f32 v%d, v%d, v%d, v%d" % (d1[r], d1[r], t2[r], d1[r]))
        for r in range(4):
            em.e("v_rcp_f32 v%d, v%d" % (d1[r], d1[r]))
        for r in range(4):
            em.e("v_sub_f32 v%d, 1.0, v%d" % (t1[r], t1[r]))
        for r in range(4):
            em.e("v_mul_f32 v%d, v%d, v%d" % (zz[r], t1[r], d1[r]))
        em.e("v_cvt_pk_bf16_f32 v%d, v%d, v%d" % (zreg + 2 * a01, zz[0], zz[1]))
        em.e("v_cvt_pk_bf16_f32 v%d, v%d, v%d" % (zreg + 2 * a01 + 1, zz[2], zz[3]))


def build(opts):
    em = Em()
    e = em.e
    GR = [int(v) for v in str(opts.get("gr", "0,8,16,24")).split(",")]
    GD = [int(v) for v in str(opts.get("gd", "6,14,22,30")).split(",")]
    XL = int(opts.get("xl", 2))
    H1 = int(opts.get("h1", 1))
    H2 = int(opts.get("h2", 6))
    e("s_cmp_ge_u32 s2, 250")
    e("s_cbranch_scc1 L_end")
    e("s_load_dwordx4 s[4:7], s[0:1], 0")
    e("s_load_dwordx4 s[8:11], s[0:1], 16")
    if opts.get("stamp"):
        e("s_load_dwordx2 s[46:47], s[0:1], 40")
        for k in range(16):
            e("s_mov_b32 s%d, 0" % (60 + k))
        e("s_memrealtime s[58:59]")
        e("s_memtime s[50:51]")
    e("v_and_b32 v0, 0x3ff, v0")
    e("v_lshrrev_b32 v1, 6, v0")
    e("v_and_b32 v%d, 63, v0" % V_LANE)
    e("v_readfirstlane_b32 s%d, v1" % S_WAVE)
    L = V_LANE
    e("v_lshrrev_b32 v5, 3, v%d" % L)
    e("v_lshlrev_b32 v5, 9, v5")
    e("v_and_b32 v6, 7, v%d" % L)
    e("v_lshl_add_u32 v%d, v6, 4, v5" % V_XD)
    e("s_lshl_b32 s%d, s2, 16" % S_G0)
    e("s_cmp_eq_u32 s2, 0")
    e("s_cselect_b32 s%d, 1, 0" % S_T3)
    e("s_cmp_eq_u32 s2, 125")
    e("s_cselect_b32 s%d, 1, s%d" % (S_T3, S_T3))
    e("s_and_b32 s%d, s%d, 3" % (S_T2, S_WAVE))
    e("s_cmp_eq_u32 s%d, 0" % S_T2)
    e("s_cselect_b32 s%d, s%d, 0" % (S_T3, S_T3))
    e("s_mul_i32 s%d, s%d, %d" % (S_T0, S_WAVE, PIECE))
    e("s_lshl_b32 s%d, s%d, 12" % (S_T1, S_WAVE))
    e("s_add_u32 s%d, s%d, s%d" % (S_T1, S_T1, S_G0))
    e("s_sub_u32 s%d, s%d, 4096" % (S_T1, S_T1))
    e("s_lshr_b32 s%d, s%d, 2" % (S_ISL, S_WAVE))
    e("v_lshrrev_b32 v1, 4, v%d" % L)
    e("v_bfe_u32 v2, v%d, 2, 2" % L)
    e("v_and_b32 v3, 3, v%d" % L)
    e("v_and_b32 v4, 1, v1")
    e("v_lshlrev_b32 v5, 13, v1")
    e("v_lshl_add_u32 v5, v2, 10, v5")
    e("v_lshlrev_b32 v6, 1, v4")
    e("v_xor_b32 v6, v6, v3")
    e("v_lshl_add_u32 v5, v6, 4, v5")
    e("s_lshl_b32 s%d, s%d, 6" % (S_T2, S_WAVE))
    e("v_add_u32 v%d, s%d, v5" % (V_WD0, S_T2))
    e("v_add_u32 v%d, 0x1000, v%d" % (V_WD1, V_WD0))
    e("s_lshl_b32 s%d, s%d, 13" % (S_RING, S_WAVE))
    e("s_add_u32 s%d, s%d, %d" % (S_RING, S_RING, RING0))
    e("s_waitcnt lgkmcnt(0)")
    if opts.get("stamp"):
        e("s_mov_b32 s60, s58")
        e("s_mov_b32 s62, s50")
    pstamp(em, opts, 11)
    for (sr, p, nbytes) in ((S_X, 4, 16384000), (S_X0, 4, 16384000), (S_W, 6, 1310720), (S_WO, 8, 131072), (S_OUT, 10, 16384000)):
        e("s_mov_b32 s%d, s%d" % (sr, p))
        e("s_mov_b32 s%d, s%d" % (sr + 1, p + 1))
        e("s_mov_b32 s%d, %d" % (sr + 2, nbytes))
        e("s_mov_b32 s%d, 0x00020000" % (sr + 3))
    e("s_cmp_eq_u32 s%d, 1" % S_T3)
    e("s_cselect_b32 s%d, 0, s%d" % (S_X0 + 2, S_X0 + 2))
    e("s_mov_b32 m0, s%d" % S_T0)
    e("s_cmp_eq_u32 s%d, 4" % S_WAVE)
    e("s_cbranch_scc1 L_c0w4")
    em.vmop("buffer_load_dwordx4 v%d, %s, s%d offen lds" % (V_XD, srd(S_X0), S_T1), ("x",))
    e("s_branch L_c0b")
    em.label("L_c0w4")
    e("buffer_load_dwordx4 v%d, %s, s%d offen lds" % (V_XD, srd(S_X), S_T1))
    em.label("L_c0b")
    e("s_add_u32 m0, s%d, %d" % (S_T0, 8 * PIECE))
    e("s_add_u32 s%d, s%d, %d" % (S_T2, S_T1, 8 * 4096))
    em.vmop("buffer_load_dwordx4 v%d, %s, s%d offen lds" % (V_XD, srd(S_X), S_T2), ("x",))
    e("s_cmp_lg_u32 s%d, 7" % S_WAVE)
    e("s_cbranch_scc1 L_c0c")
    e("s_mov_b32 m0, %d" % (16 * PIECE))
    e("s_add_u32 s%d, s%d, %d" % (S_T2, S_G0, 15 * 4096))
    e("buffer_load_dwordx4 v%d, %s, s%d offen lds" % (V_XD, srd(S_X), S_T2))
    em.label("L_c0c")

    def soff_const(step):
        it, rel = divmod(step, 10)
        kh, tap = divmod(rel, 5)
        return it, tap * 262144 + kh * 32768

    def dma_items(step, u):
        fg, h = u >> 1, u & 1
        slot = (4 * step + u) % NRING
        m0 = ("op", "s_add_u32 m0, s%d, %d" % (S_RING, slot * 1024 - fg * 512)) if slot * 1024 - fg * 512 >= 0 else \
             ("op", "s_sub_u32 m0, s%d, %d" % (S_RING, fg * 512 - slot * 1024))
        d = ("vm", "buffer_load_dwordx4 v%d, %s, s%d offen offset:%d lds" % (
            V_WD1 if h else V_WD0, srd(S_W), S_SOFF, fg * 512), ("u", step, u))
        return m0, d

    def tr_items(step, u):
        fg, h = u >> 1, u & 1
        slot = (4 * step + u) % NRING
        ab = AREG + 16 * (step % 2)
        out = [("wvm", ("u", step, u))]
        for a01 in range(2):
            d = ab + 4 * (2 * fg + a01) + 2 * h
            out.append(("lg", "ds_read_b64_tr_b16 %s, v%d offset:%d" % (vr(d, 2), V_A1 if a01 else V_A0, slot * 1024),
                        ("a", step, u, a01)))
        return out

    def ring_fill(track):
        for st in range(2):
            e("s_mov_b32 s%d, %d" % (S_SOFF, soff_const(st)[1]))
            for u in range(4):
                m0, d = dma_items(st, u)
                em.item(m0)
                e("s_nop 0")
                if track:
                    em.item(d)
                else:
                    e(d[1])

    P64 = int(opts.get("p64", 0))
    PS = int(opts.get("ps", 9))
    PH = int(opts.get("ph", 5))
    QA = int(opts.get("qa", 5))
    e("s_lshr_b32 s%d, s2, 3" % S_I)
    e("s_and_b32 s%d, s%d, 3" % (S_T2, S_WAVE))
    e("s_cmp_eq_u32 s%d, 0" % S_ISL)
    e("s_cbranch_scc1 L_hpro")
    ring_fill(True)
    pstamp(em, opts, 12)
    e("s_branch L_ppro")

    def xchunk_items(lab):
        out = [("op", "s_add_u32 s%d, s%d, %d" % (S_XM, S_XM, CHUNK)),
               ("op", "s_add_u32 s%d, s%d, 128" % (S_XS, S_XS)),
               ("op", "s_add_u32 s%d, s%d, %d" % (S_X16M, S_X16M, CHUNK)),
               ("op", "s_add_u32 s%d, s%d, 128" % (S_X16S, S_X16S)),
               ("op", "s_add_u32 s%d, s%d, 1" % (S_XW, S_XW))]
        for i in range(4):
            out.append(("op", "s_add_u32 m0, s%d, %d" % (S_XM, 4 * i * PIECE)))
            out.append(("op", "s_add_u32 s%d, s%d, %d" % (S_T2, S_XS, 4 * i * 4096)))
            out.append(("op", "buffer_load_dwordx4 v%d, %s, s%d offen lds" % (V_XD, srd(S_X0 if i == 0 else S_X), S_T2)))
        out.append(("op", "s_mov_b32 m0, s%d" % S_X16M))
        out.append(("op", "s_cmp_lg_u32 s%d, s%d" % (S_WAVE, S_XW)))
        out.append(("op", "s_cbranch_scc1 %s" % lab))
        out.append(("op", "buffer_load_dwordx4 v%d, %s, s%d offen lds" % (V_XD, srd(S_X), S_X16S)))
        out.append(("lab", lab))
        if opts.get("nox"):
            out = [o for o in out if "buffer_load" not in o[1]]
        return out

    em.label("L_hpro")
    if opts.get("pf", 1):
        e("s_and_b32 s%d, s%d, 1" % (S_T0, S_T2))
        e("s_lshl_b32 s%d, s%d, 7" % (S_T0, S_T0))
        e("s_lshr_b32 s%d, s%d, 1" % (S_T1, S_T2))
        e("s_lshl_b32 s%d, s%d, 9" % (S_T1, S_T1))
        e("s_add_u32 s%d, s%d, s%d" % (S_T0, S_T0, S_T1))
        e("s_lshl_b32 s%d, s%d, 10" % (S_P0, S_I))
        e("s_add_u32 s%d, s%d, s%d" % (S_P0, S_P0, S_T0))
        e("s_add_u32 s%d, s%d, %d" % (S_P1, S_P0, 229376))
        e("s_add_u32 s%d, s%d, %d" % (S_P2, S_P0, 1048576))
        lst = []
        lq = list(range(2, 2 + PS))
        hq = list(range(0, PH))
        order = [(q, 1) for q in lq[:2]] + [(q, 0) for q in hq[:2]] + [(q, 1) for q in lq[2:4]] + [(q, 0) for q in hq[2:]] + [(q, 1) for q in lq[4:]]
        for (q, isl) in order:
            cs, tap = divmod(q, 5)
            c1 = tap * 262144 + cs * 32768 - q * 1024
            e("s_cmp_ge_u32 s%d, %d" % (S_I, q))
            if tap:
                imm = c1 - 229376
                e("s_cselect_b32 s%d, s%d, s%d" % (S_T0, S_P1, S_P0))
            else:
                imm = c1
                e("s_cselect_b32 s%d, s%d, s%d" % (S_T0, S_P0, S_P2))
            assert imm >= 0
            for hh in range(1 + P64):
                e("s_buffer_load_dword s%d, %s, s%d offset:%d" % (S_PD, srd(S_W), S_T0, imm + 256 * isl + 64 * hh))
    pstamp(em, opts, 12)
    em.label("L_ppro")
    pstamp(em, opts, 13)
    e("s_mul_i32 s%d, s%d, %d" % (S_XM, S_T2, PIECE))
    e("s_lshl_b32 s%d, s%d, 12" % (S_XS, S_T2))
    e("s_add_u32 s%d, s%d, s%d" % (S_XS, S_XS, S_G0))
    e("s_sub_u32 s%d, s%d, 4096" % (S_XS, S_XS))
    e("s_mov_b32 s%d, %d" % (S_X16M, 16 * PIECE))
    e("s_add_u32 s%d, s%d, %d" % (S_X16S, S_G0, 15 * 4096))
    e("s_mov_b32 s%d, 4" % S_XW)
    e("v_lshrrev_b32 v5, 3, v%d" % L)
    e("v_and_b32 v6, 7, v%d" % L)
    e("v_lshlrev_b32 v6, 7, v6")
    e("s_lshl_b32 s%d, s%d, 3" % (S_T0, S_T2))
    e("s_add_u32 s%d, s%d, %d" % (S_T0, S_T0, QA))
    for (dst, qadd) in ((V_PFA, None), (V_PFB, QA + 32)):
        if qadd is None:
            e("v_add_u32 v7, s%d, v5" % S_T0)
        else:
            e("v_add_u32 v7, %d, v5" % qadd)
        e("v_mul_u32_u24 v7, 31, v7")
        e("v_add_u32 v7, s%d, v7" % S_I)
        e("v_lshrrev_b32 v8, 5, v7")
        e("v_and_b32 v7, 31, v7")
        e("v_mul_u32_u24 v9, 13, v8")
        e("v_lshrrev_b32 v9, 6, v9")
        e("v_mul_u32_u24 v10, 5, v9")
        e("v_sub_u32 v8, v8, v10")
        e("v_lshlrev_b32 v8, 18, v8")
        e("v_lshl_add_u32 v8, v9, 15, v8")
        e("v_lshl_add_u32 v8, v7, 10, v8")
        e("v_add_u32 v%d, v8, v6" % dst)
    e("s_lshl_b32 s%d, s%d, 13" % (S_T0, S_I))
    e("v_lshlrev_b32 v5, 7, v%d" % L)
    e("v_add_u32 v%d, s%d, v5" % (V_PFC, S_T0))
    e("s_mov_b32 s%d, 0x%08x" % (S_C1, f32bits(-2.0 * 1.4426950408889634)))
    e("s_mov_b32 s%d, 0x%08x" % (S_C2, f32bits(-1.4426950408889634)))
    e("s_mov_b32 s%d, 0x%08x" % (S_CL, f32bits(30.0)))
    e("v_lshlrev_b32 v5, 8, v1")
    e("v_lshl_add_u32 v5, v2, 6, v5")
    e("v_lshl_add_u32 v6, v4, 5, v5")
    e("v_lshl_add_u32 v6, v3, 3, v6")
    e("v_add_u32 v%d, s%d, v6" % (V_A0, S_RING))
    e("v_xor_b32 v6, 32, v6")
    e("v_add_u32 v%d, s%d, v6" % (V_A1, S_RING))
    e("s_and_b32 s%d, s%d, 3" % (S_T2, S_WAVE))
    e("s_mul_i32 s%d, s%d, %d" % (S_WOR, S_T2, NWO * 1024))
    e("s_add_u32 s%d, s%d, %d" % (S_WOR, S_WOR, WOB))
    e("v_lshl_add_u32 v6, v3, 4, v5")
    e("v_add_u32 v%d, s%d, v6" % (V_OA, S_WOR))
    e("v_lshrrev_b32 v6, 2, v%d" % L)
    e("v_lshlrev_b32 v6, 9, v6")
    e("v_lshl_add_u32 v6, v3, 4, v6")
    e("s_lshl_b32 s%d, s%d, 7" % (S_T2, S_T2))
    e("v_add_u32 v%d, s%d, v6" % (V_WOD, S_T2))
    e("v_and_b32 v7, 15, v%d" % L)
    e("s_mov_b32 s%d, %d" % (S_T1, PIECE))
    e("v_mul_lo_u32 v5, v7, s%d" % S_T1)
    e("v_lshl_add_u32 v%d, v1, 4, v5" % V_X)
    e("v_lshlrev_b32 v5, 12, v7")
    e("v_lshl_add_u32 v5, v1, 4, v5")
    e("v_add_u32 v%d, s%d, v5" % (V_OUT, S_T2))
    e("v_lshlrev_b32 v5, 4, v%d" % L)
    e("v_add_u32 v%d, %d, v5" % (V_Z, RING0))
    e("v_add_u32 v%d, s%d, v5" % (V_ZW, S_RING))
    e("v_mov_b32 v%d, %d" % (V_FA, FLG))
    e("v_mov_b32 v%d, %d" % (V_FL, FLG + F_X + 4))
    e("v_mov_b32 v%d, 1" % V_ONE)
    e("v_mov_b32 v%d, %d" % (V_SG, FLG + F_X + 4))
    e("s_cmp_lg_u32 s%d, 4" % S_WAVE)
    e("s_cbranch_scc1 L_nofl")
    e("v_lshlrev_b32 v5, 2, v%d" % L)
    e("v_add_u32 v5, %d, v5" % FLG)
    e("v_cmp_eq_u32 vcc, 4, v%d" % L)
    e("v_mov_b32 v6, 0")
    e("s_nop 0")
    e("v_cndmask_b32 v6, v6, v%d, vcc" % L)
    e("ds_write_b32 v5, v6")
    em.label("L_nofl")
    for r in range(128):
        e("v_mov_b32 v%d, 0" % (ACC + r))
    e("s_mov_b32 s%d, s%d" % (S_HOOK, S_ISL))
    e("s_mov_b32 s%d, 0" % S_IT)
    e("s_mov_b32 s%d, 0" % S_CNT)
    pstamp(em, opts, 14)
    e("s_cmp_eq_u32 s%d, 0" % S_ISL)
    e("s_cbranch_scc1 L_hw")
    e("s_waitcnt vmcnt(8) lgkmcnt(0)")
    if XL > 0:
        e("s_setprio 3")
    else:
        e("s_setprio 1")
    e("s_branch L_bar")
    em.label("L_hw")
    e("s_waitcnt vmcnt(0)")
    e("s_setprio 2")
    em.label("L_bar")
    pstamp(em, opts, 15)
    em.vm = [t for t in em.vm if t != ("x",)]
    e("s_barrier")
    e("s_cmp_lg_u32 s%d, 0" % S_ISL)
    e("s_cbranch_scc1 L_nofill")
    ring_fill(False)
    em.label("L_nofill")
    stamp(em, opts, 3)
    pcollect(em, opts)

    slotkey = [None] * 8

    def bkey(step, j):
        cs, tap = divmod(step, 5)
        sidx = j - 2 * tap + 8
        return sidx & 7, (cs, sidx)

    def bread(step, j):
        slot, key = bkey(step, j)
        if slotkey[slot] == key:
            return None
        slotkey[slot] = key
        cs, tap = divmod(step, 5)
        sidx = j - 2 * tap + 8
        off = (sidx >> 3) * PIECE + (sidx & 7) * 128 + (cs & 1) * 64
        return ("lg", "ds_read_b128 %s, v%d offset:%d" % (vr(BREG + 4 * slot, 4), V_X, off), ("b", key))

    def soff_item(step, cur):
        it, c = soff_const(step)
        return ("op", "s_add_u32 s%d, s%d, %d" % (S_SOFF, S_IT, c + (it - cur) * 65536))

    for j in range(7, -1, -1):
        em.item(bread(0, j))
    em.item(soff_item(2, 0))
    for u in range(4):
        for it in tr_items(0, u):
            em.item(it)
    for u in range(4):
        m0, d = dma_items(2, u)
        em.item(m0)
        em.wait_lg(("a", 0, u, 1))
        e("s_nop 0")
        em.item(d)
    stamp(em, opts, 4)

    def hook(items, lab):
        return [("op", "s_cmp_eq_u32 s%d, 0" % S_HOOK), ("op", "s_cbranch_scc1 %s" % lab)] + items + [("lab", lab)]

    def signal(c):
        return [("op", "ds_add_u32 v%d, v%d offset:%d" % (V_FA, V_ONE, F_X + 4 * c))]

    def gstep(step):
        rel = step % 10
        cur = step // 10
        ab = AREG + 16 * (step % 2)
        gaps = [[] for _ in range(33)]
        gaps[0].append(soff_item(step + 3, cur))
        if rel == 7:
            gaps[0].append(("op", "s_cmp_eq_u32 s%d, 3" % S_CNT))
            gaps[0].append(("op", "s_cselect_b32 s%d, 0, s%d" % (S_W + 2, S_W + 2)))
        for u in range(4):
            for it in tr_items(step + 1, u):
                gaps[GR[u]].append(it)
            m0, d = dma_items(step + 3, u)
            gaps[GD[u] - 1].append(m0)
            gaps[GD[u]].append(("wlg", ("a", step + 1, u, 1)))
            gaps[GD[u]].append(d)
        sig = [("op", "s_mov_b64 exec, 1"),
               ("op", "ds_add_u32 v%d, v%d" % (V_SG, V_ONE)),
               ("op", "s_mov_b64 exec, -1"),
               ("op", "v_add_u32 v%d, 4, v%d" % (V_SG, V_SG))]

        def cpf(v, sr):
            return [("op", "buffer_load_dword v%d, v%d, %s, 0 offen offset:%d" % (V_DUMMY, v, srd(sr), 64 * hh)) for hh in range(1 + P64)] if (opts.get("pf", 1) and not opts.get("nocp")) else []
        if rel == H1:
            its = [("op", "s_cmp_eq_u32 s%d, 0" % S_CNT), ("op", "s_cbranch_scc1 L_h1a")] + sig + \
                  [("op", "s_branch L_h1b"), ("lab", "L_h1a")] + cpf(V_PFA, S_W) + [("lab", "L_h1b")] + xchunk_items("L_hx1")
            gaps[2] += hook(its, "L_hk1")
        if rel == H2:
            its = sig + [("op", "s_cmp_lg_u32 s%d, 0" % S_CNT), ("op", "s_cbranch_scc1 L_hk2")] + xchunk_items("L_hx2") + \
                  [("op", "s_cmp_lg_u32 s%d, 4" % S_WAVE), ("op", "s_cbranch_scc1 L_hk2")] + cpf(V_PFB, S_W) + cpf(V_PFC, S_WO)
            gaps[2] += hook(its, "L_hk2")
        if rel == 8:
            gaps[10].append(("lg", "ds_read_b32 v%d, v%d" % (V_F, V_FL), ("fl", step)))
        pre = []
        if rel == 9:
            pre = [("wlg", ("fl", step - 1)),
                   ("op", "v_readfirstlane_b32 s%d, v%d" % (S_T0, V_F)),
                   ("op", "v_add_u32 v%d, %d, v%d" % (V_X, CHUNK, V_X)),
                   ("op", "s_cmp_eq_u32 s%d, 4" % S_T0),
                   ("op", "s_cbranch_scc1 L_pok"),
                   ("lab", "L_pspin"),
                   ("op", "ds_read_b32 v%d, v%d" % (V_F, V_FL)),
                   ("op", "s_waitcnt lgkmcnt(0)"),
                   ("op", "v_readfirstlane_b32 s%d, v%d" % (S_T0, V_F)),
                   ("op", "s_cmp_eq_u32 s%d, 4" % S_T0),
                   ("op", "s_cbranch_scc0 L_pspin"),
                   ("lab", "L_pok"),
                   ("op", "v_add_u32 v%d, 4, v%d" % (V_FL, V_FL))]
        for it in pre:
            em.item(it)
        nxt = step + 1
        pending = {}
        for j2 in range(8):
            slot, key = bkey(nxt, j2)
            pending[slot] = j2
        k = 0
        for j in range(7, -1, -1):
            slot, key = bkey(step, j)
            em.wait_lg(("b", key))
            for a in range(4):
                em.wait_lg(("a", step, 2 * (a >> 1) + 1, a & 1))
                em.e("v_mfma_f32_16x16x32_bf16 %s, %s, %s, %s" % (
                    vr(acc(a, j), 4), vr(ab + 4 * a, 4), vr(BREG + 4 * slot, 4), vr(acc(a, j), 4)))
                if a == 3 and slot in pending:
                    it = bread(nxt, pending[slot])
                    if it:
                        em.item(it)
                for it in gaps[k]:
                    em.item(it)
                k += 1

    start = len(em.lines)
    for s in range(0, 10):
        gstep(s)
    mid = len(em.lines)
    for s in range(10, 20):
        gstep(s)
    end = len(em.lines)
    b1 = em.lines[start:mid]
    b2 = em.lines[mid:end]
    if b1 != b2:
        for x1, x2 in zip(b1, b2):
            if x1 != x2:
                print("DIFF", x1, "|", x2)
    assert b1 == b2, "loop body not steady"
    em.lines = em.lines[:start]
    if opts.get("nodma"):
        b1 = [l for l in b1 if not ("s[16:19]" in l) and "vmcnt" not in l]
    if opts.get("nomfma"):
        b1 = [l for l in b1 if "v_mfma" not in l]
    em.label("L_loop")
    em.lines += b1
    if opts.get("stamp") == 2:
        e("s_memtime s[80:81]")
        e("s_mov_b32 s71, s72")
        e("s_mov_b32 s72, s73")
        e("s_mov_b32 s73, s74")
        e("s_waitcnt lgkmcnt(0)")
        e("s_mov_b32 s74, s80")
    e("s_add_u32 s%d, s%d, 65536" % (S_IT, S_IT))
    e("s_add_u32 s%d, s%d, 1" % (S_CNT, S_CNT))
    e("s_cmp_eq_u32 s%d, 2" % S_CNT)
    e("s_cselect_b32 s%d, 0, s%d" % (S_HOOK, S_HOOK))
    if XL > 0:
        e("s_mul_i32 s%d, s%d, s%d" % (S_T0, S_CNT, S_ISL))
        e("s_cmp_lg_u32 s%d, %d" % (S_T0, XL))
        e("s_cbranch_scc1 L_nsp")
        e("s_setprio 1")
        em.label("L_nsp")
    e("s_cmp_lt_u32 s%d, 4" % S_CNT)
    e("s_cbranch_scc1 L_loop")
    e("s_waitcnt lgkmcnt(0)")
    em.lg = []
    stamp(em, opts, 5)
    e("s_cmp_lg_u32 s%d, 0" % S_ISL)
    e("s_cbranch_scc1 L_low")
    vm_after_loop = list(em.vm)

    e("s_setprio 0")

    def wo_dma(U):
        ks, u = divmod(U, 4)
        ch, h = u >> 1, u & 1
        slot = U % NWO
        off = slot * 1024 - ch * 64
        m0 = ("op", "s_add_u32 m0, s%d, %d" % (S_WOR, off)) if off >= 0 else ("op", "s_sub_u32 m0, s%d, %d" % (S_WOR, -off))
        so = ("op", "s_mov_b32 s%d, %d" % (S_SOFF, (32 * ks + 16 * h) * 512))
        d = ("vm", "buffer_load_dwordx4 v%d, %s, s%d offen offset:%d lds" % (V_WOD, srd(S_WO), S_SOFF, ch * 64), ("o", U))
        return [m0, so, d]

    def wo_tr(U):
        ks, u = divmod(U, 4)
        ch, h = u >> 1, u & 1
        slot = U % NWO
        ab = AREG + 16 * (ks % 4)
        out = [("wvm", ("o", U))]
        for a1 in range(2):
            d = ab + 4 * (2 * ch + a1) + 2 * h
            out.append(("lg", "ds_read_b64_tr_b16 %s, v%d offset:%d" % (vr(d, 2), V_OA, slot * 1024 + a1 * 8), ("oa", U, a1)))
        return out

    for U in range(NWO):
        for it in wo_dma(U):
            em.item(it)
    nextdma = NWO
    for t, j in enumerate(range(7, -1, -1)):
        zreg = BREG + 16 + 4 * (t % 4)
        gate_tile(em, j, zreg)
        if t == 0:
            em.wait_vm(vm_after_loop[-1])
        em.lgop("ds_write_b128 v%d, %s offset:%d" % (V_ZW, vr(zreg, 4), j * 1024), ("zw", j))
        if t >= 1:
            em.wait_lg(("oa", 2 * t - 1, 1))
            for U in (nextdma, nextdma + 1):
                for it in wo_dma(U):
                    em.item(it)
            nextdma += 2
        for U in (2 * t, 2 * t + 1):
            for it in wo_tr(U):
                em.item(it)
    e("s_mov_b64 exec, 1")
    em.lgop("ds_add_u32 v%d, v%d offset:%d" % (V_FA, V_ONE, F_ZH), ("zf",))
    e("s_mov_b64 exec, -1")
    em.wait_lg(("oa", 15, 1))
    for U in (nextdma, nextdma + 1):
        for it in wo_dma(U):
            em.item(it)
    nextdma += 2
    stamp(em, opts, 6)
    em.label("L_zhs")
    e("ds_read_b32 v%d, v%d offset:%d" % (V_F, V_FA, F_ZH))
    e("s_waitcnt lgkmcnt(0)")
    em.lg = []
    e("v_readfirstlane_b32 s%d, v%d" % (S_T0, V_F))
    e("s_cmp_eq_u32 s%d, 4" % S_T0)
    e("s_cbranch_scc0 L_zhs")
    if opts.get("hp2"):
        e("s_setprio 2")
    stamp(em, opts, 7)

    def zread(ks, j, slot):
        return ("lg", "ds_read_b128 %s, v%d offset:%d" % (vr(BREG + 4 * slot, 4), V_Z, ks * 8192 + j * 1024), ("z", ks, j))

    for j in range(7, -1, -1):
        em.item(zread(0, j, j))
    for ks in range(4):
        ab = AREG + 16 * ks
        gaps = [[] for _ in range(33)]
        if ks >= 1:
            for u in range(4):
                U = 4 * (ks + 3) + u
                for it in wo_tr(U):
                    gaps[8 * u].append(it)
                if nextdma < 32:
                    gaps[8 * u + 6].append(("wlg", ("oa", U, 1)))
                    for it in wo_dma(nextdma):
                        gaps[8 * u + 6].append(it)
                    nextdma += 1
        k = 0
        for j in range(7, -1, -1):
            em.wait_lg(("z", ks, j))
            for a in range(4):
                c = "0" if ks == 0 else vr(acc(a, j), 4)
                e("v_mfma_f32_16x16x32_bf16 %s, %s, %s, %s" % (vr(acc(a, j), 4), vr(ab + 4 * a, 4), vr(BREG + 4 * j, 4), c))
                if a == 3 and ks < 3:
                    em.item(zread(ks + 1, j, j))
                for it in gaps[k]:
                    em.item(it)
                k += 1
    assert nextdma == 32, nextdma
    for u in range(4):
        for it in wo_tr(28 + u):
            em.item(it)
    stamp(em, opts, 8)

    def epi(j, t):
        for ch in range(2):
            tt = V_DUMMY + 4 * ((2 * t + ch) % 4) if False else BREG + 0
            tt = 240 + 4 * ((2 * t + ch) % 4)
            for a1 in range(2):
                aa = acc(2 * ch + a1, j)
                e("v_cvt_pk_bf16_f32 v%d, v%d, v%d" % (tt + 2 * a1, aa, aa + 1))
                e("v_cvt_pk_bf16_f32 v%d, v%d, v%d" % (tt + 2 * a1 + 1, aa + 2, aa + 3))
            e("buffer_store_dwordx4 %s, v%d, %s, s%d offen offset:%d" % (
                vr(tt, 4), V_OUT, srd(S_OUT), S_G0, j * 512 + ch * 64))

    prev = None
    for t, j in enumerate(range(7, -1, -1)):
        sb = 4 * (t % 2)
        em.label("L_zl%d" % j)
        e("ds_read_b32 v%d, v%d offset:%d" % (V_F, V_FA, F_ZL + 4 * j))
        for k4 in range(4):
            e(zread(4 + k4, j, sb + k4)[1])
        if prev is not None:
            pass
        e("s_waitcnt lgkmcnt(0)")
        em.lg = []
        e("v_readfirstlane_b32 s%d, v%d" % (S_T0, V_F))
        e("s_cmp_eq_u32 s%d, 4" % S_T0)
        e("s_cbranch_scc0 L_zl%d" % j)
        for k4 in range(4):
            ab = AREG + 16 * k4
            for a in range(4):
                e("v_mfma_f32_16x16x32_bf16 %s, %s, %s, %s" % (vr(acc(a, j), 4), vr(ab + 4 * a, 4), vr(BREG + 4 * (sb + k4), 4), vr(acc(a, j), 4)))
        e("s_nop 7")
        epi(j, t)
    stamp(em, opts, 9)
    if opts.get("stamp"):
        e("s_waitcnt vmcnt(0)")
    stamp(em, opts, 10)
    stamp_out(em, opts)
    e("s_endpgm")

    em.label("L_low")
    em.vm = []
    em.lg = []
    e("s_setprio 3")
    for t, j in enumerate(range(7, -1, -1)):
        zreg = BREG + 16 + 4 * (t % 4)
        gate_tile(em, j, zreg)
        if t == 0:
            e("s_waitcnt vmcnt(0)")
        e("ds_write_b128 v%d, %s offset:%d" % (V_ZW, vr(zreg, 4), j * 1024))
        e("s_mov_b64 exec, 1")
        e("ds_add_u32 v%d, v%d offset:%d" % (V_FA, V_ONE, F_ZL + 4 * j))
        e("s_mov_b64 exec, -1")
    e("s_waitcnt lgkmcnt(0)")
    stamp(em, opts, 6)
    stamp_out(em, opts)
    em.label("L_end")
    e("s_endpgm")

    txt = HEADER % (LDS_TOTAL, NAME, NAME, NAME) + "\n".join(em.lines) + FOOTER % NAME
    return txt


if __name__ == "__main__":
    out = sys.argv[1] if len(sys.argv) > 1 else "cdna_kernels/%s.s" % NAME
    opts = {}
    for a in sys.argv[2:]:
        k, v = a.split("=")
        opts[k] = int(v) if v.isdigit() else v
    open(out, "w").write(build(opts))
    print("wrote", out)
```

```python
import sys
import struct

NAME = "standalone__autoregressive_conv_wavenet__speech"

HEADER = """; Kernarg layout for this problem (48 bytes, ptrs only, base s[0:1]):
; @launch grid=(250,1,1) block=(512,1,1) lds=%d
.amdgcn_target "amdgcn-amd-amdhsa--gfx950"
.text
.globl %s_kernel
.p2align 8
.type %s_kernel,@function
%s_kernel:
"""

FOOTER = """
.section .rodata,"a"
.p2align 6
.amdhsa_kernel %s_kernel
  .amdhsa_next_free_vgpr 256
  .amdhsa_next_free_sgpr 102
  .amdhsa_accum_offset 256
  .amdhsa_group_segment_fixed_size 0
  .amdhsa_kernarg_size 48
  .amdhsa_user_sgpr_count 2
  .amdhsa_user_sgpr_kernarg_segment_ptr 1
  .amdhsa_system_sgpr_workgroup_id_x 1
.end_amdhsa_kernel
"""

PIECE = 1056
CHUNK = 17 * PIECE
XBYTES = 4 * CHUNK
RING0 = XBYTES
NRING = 8
WOB = RING0 + 65536
NWO = 6
FLG = WOB + 4 * NWO * 1024
LDS_TOTAL = FLG + 256
F_X = 0
F_ZH = 32
F_ZL = 64


def f32bits(x):
    return struct.unpack("<I", struct.pack("<f", x))[0]


ACC = 0
BREG = 128
AREG = 160
(V_WD0, V_WD1, V_A0, V_A1, V_X, V_Z, V_ZW, V_WOD, V_OA, V_OUT, V_XD, V_FL, V_F, V_ONE, V_PF, V_FA) = range(224, 240)
V_DUMMY = 240
V_LANE = 244
V_PFA, V_PFB, V_PFC, V_SG = 245, 246, 247, 248

S_X, S_W, S_WO, S_OUT, S_X0 = 12, 16, 20, 24, 28
S_WAVE = 32
S_IT = 33
S_CNT = 34
S_SOFF = 35
S_T0, S_T1, S_T2, S_T3 = 36, 37, 38, 39
S_G0 = 40
S_RING = 41
S_C1, S_C2, S_CL = 42, 43, 44
S_HOOK = 45
S_XM = 48
S_XS = 49
S_WOR = 56
S_ISL = 57
S_X16M, S_X16S, S_XW = 90, 91, 92
S_I, S_P0, S_P1, S_P2, S_PD = 93, 94, 95, 96, 97


def acc(a, j):
    return ACC + (j * 4 + a) * 4


def vr(b, n):
    return "v[%d:%d]" % (b, b + n - 1)


def srd(b):
    return "s[%d:%d]" % (b, b + 3)


class Em:
    def __init__(self):
        self.lines = []
        self.vm = []
        self.lg = []
        self.nlab = 0

    def e(self, s):
        self.lines.append("    " + s)

    def label(self, s):
        self.lines.append(s + ":")

    def vmop(self, s, tag):
        self.e(s)
        self.vm.append(tag)

    def lgop(self, s, tag):
        self.e(s)
        self.lg.append(tag)

    def wait_vm(self, tag):
        if tag in self.vm:
            idx = len(self.vm) - 1 - self.vm[::-1].index(tag)
            n = len(self.vm) - 1 - idx
            self.e("s_waitcnt vmcnt(%d)" % min(n, 63))
            self.vm = self.vm[idx + 1:]

    def wait_lg(self, tag):
        if tag in self.lg:
            idx = len(self.lg) - 1 - self.lg[::-1].index(tag)
            n = len(self.lg) - 1 - idx
            self.e("s_waitcnt lgkmcnt(%d)" % min(n, 15))
            self.lg = self.lg[idx + 1:]

    def wait_all(self):
        self.e("s_waitcnt vmcnt(0) lgkmcnt(0)")
        self.vm = []
        self.lg = []

    def item(self, it):
        if it[0] == "op":
            self.e(it[1])
        elif it[0] == "lab":
            self.label(it[1])
        elif it[0] == "vm":
            self.vmop(it[1], it[2])
        elif it[0] == "lg":
            self.lgop(it[1], it[2])
        elif it[0] == "wvm":
            self.wait_vm(it[1])
        elif it[0] == "wlg":
            self.wait_lg(it[1])


def stamp(em, opts, k, real=False):
    if not opts.get("stamp"):
        return
    em.e("%s s[50:51]" % ("s_memrealtime" if real else "s_memtime"))
    em.e("s_waitcnt lgkmcnt(0)")
    em.lg = []
    em.e("s_mov_b32 s%d, s50" % (60 + k))


def pstamp(em, opts, k):
    if opts.get("stamp") != 1:
        return
    em.e("s_memtime s[%d:%d]" % (80 + 2 * (k - 11), 81 + 2 * (k - 11)))


def pcollect(em, opts):
    if opts.get("stamp") != 1:
        return
    for k in range(11, 16):
        em.e("s_mov_b32 s%d, s%d" % (60 + k, 80 + 2 * (k - 11)))


def stamp_out(em, opts):
    if not opts.get("stamp"):
        return
    stamp(em, opts, 1, real=True)
    e = em.e
    if opts.get("dbg"):
        stamp(em, opts, 15)
        e("s_load_dwordx2 s[52:53], s[0:1], 32")
        e("s_waitcnt lgkmcnt(0)")
        e("s_mov_b32 s54, 256")
        e("s_mov_b32 s55, 0x00020000")
        e("s_mov_b64 exec, 1")
        e("v_mov_b32 v250, 0")
        e("v_mov_b32 v251, s61")
        e("buffer_atomic_umax v251, v250, s[52:55], 0 offen offset:0")
        e("s_not_b32 s50, s60")
        e("v_mov_b32 v251, s50")
        e("buffer_atomic_umax v251, v250, s[52:55], 0 offen offset:4")
        e("s_sub_u32 s50, s75, s62")
        e("v_mov_b32 v251, s50")
        e("buffer_atomic_umax v251, v250, s[52:55], 0 offen offset:8")
        e("s_sub_u32 s50, s61, s60")
        e("v_mov_b32 v251, s50")
        e("buffer_atomic_umax v251, v250, s[52:55], 0 offen offset:12")
        e("s_lshl_b32 s50, s2, 3")
        e("s_add_u32 s50, s50, s%d" % S_WAVE)
        e("s_cmp_lg_u32 s50, 800")
        e("s_cbranch_scc1 L_dbgx%d" % em.nlab)
        for k in range(3, 15):
            e("s_sub_u32 s50, s%d, s62" % (60 + k))
            e("v_mov_b32 v251, s50")
            e("buffer_store_dword v251, v250, s[52:55], 0 offen offset:%d" % (4 * (k + 1)))
        em.label("L_dbgx%d" % em.nlab)
        em.nlab += 1
        return
    e("s_mov_b32 s52, s46")
    e("s_mov_b32 s53, s47")
    e("s_mov_b32 s54, 0x100000")
    e("s_mov_b32 s55, 0x00020000")
    e("s_lshl_b32 s50, s2, 3")
    e("s_add_u32 s50, s50, s%d" % S_WAVE)
    e("s_lshl_b32 s50, s50, 6")
    e("s_mov_b64 exec, 1")
    e("v_mov_b32 v250, 0")
    for k in range(16):
        e("v_mov_b32 v251, s%d" % (60 + k))
        e("buffer_store_dword v251, v250, s[52:55], s50 offen offset:%d" % (4 * k))


def gate_tile(em, j, zreg):
    T = BREG
    for a01 in range(2):
        f = acc(a01, j)
        g = acc(2 + a01, j)
        t1 = [T + 0 + r for r in range(4)]
        t2 = [T + 4 + r for r in range(4)]
        d1 = [T + 8 + r for r in range(4)]
        zz = [T + 12 + r for r in range(4)]
        for r in range(4):
            em.e("v_mul_f32 v%d, s%d, v%d" % (t1[r], S_C1, f + r))
        for r in range(4):
            em.e("v_mul_f32 v%d, s%d, v%d" % (t2[r], S_C2, g + r))
        for r in range(4):
            em.e("v_min_f32 v%d, s%d, v%d" % (t1[r], S_CL, t1[r]))
        for r in range(4):
            em.e("v_exp_f32 v%d, v%d" % (t2[r], t2[r]))
        for r in range(4):
            em.e("v_exp_f32 v%d, v%d" % (t1[r], t1[r]))
        em.e("s_nop 0")
        for r in range(4):
            em.e("v_add_f32 v%d, 1.0, v%d" % (d1[r], t1[r]))
        for r in range(4):
            em.e("v_fma_f32 v%d, v%d, v%d, v%d" % (d1[r], d1[r], t2[r], d1[r]))
        for r in range(4):
            em.e("v_rcp_f32 v%d, v%d" % (d1[r], d1[r]))
        for r in range(4):
            em.e("v_sub_f32 v%d, 1.0, v%d" % (t1[r], t1[r]))
        for r in range(4):
            em.e("v_mul_f32 v%d, v%d, v%d" % (zz[r], t1[r], d1[r]))
        em.e("v_cvt_pk_bf16_f32 v%d, v%d, v%d" % (zreg + 2 * a01, zz[0], zz[1]))
        em.e("v_cvt_pk_bf16_f32 v%d, v%d, v%d" % (zreg + 2 * a01 + 1, zz[2], zz[3]))


def build(opts):
    em = Em()
    e = em.e
    GR = [int(v) for v in str(opts.get("gr", "0,8,16,24")).split(",")]
    GD = [int(v) for v in str(opts.get("gd", "6,14,22,30")).split(",")]
    XL = int(opts.get("xl", 2))
    H1 = int(opts.get("h1", 1))
    H2 = int(opts.get("h2", 6))
    e("s_cmp_ge_u32 s2, 250")
    e("s_cbranch_scc1 L_end")
    e("s_load_dwordx4 s[4:7], s[0:1], 0")
    e("s_load_dwordx4 s[8:11], s[0:1], 16")
    if opts.get("stamp"):
        e("s_load_dwordx2 s[46:47], s[0:1], 40")
        for k in range(16):
            e("s_mov_b32 s%d, 0" % (60 + k))
        e("s_memrealtime s[58:59]")
        e("s_memtime s[50:51]")
    e("v_and_b32 v0, 0x3ff, v0")
    e("v_lshrrev_b32 v1, 6, v0")
    e("v_and_b32 v%d, 63, v0" % V_LANE)
    e("v_readfirstlane_b32 s%d, v1" % S_WAVE)
    L = V_LANE
    e("v_lshrrev_b32 v5, 3, v%d" % L)
    e("v_lshlrev_b32 v5, 9, v5")
    e("v_and_b32 v6, 7, v%d" % L)
    e("v_lshl_add_u32 v%d, v6, 4, v5" % V_XD)
    e("s_lshl_b32 s%d, s2, 16" % S_G0)
    e("s_cmp_eq_u32 s2, 0")
    e("s_cselect_b32 s%d, 1, 0" % S_T3)
    e("s_cmp_eq_u32 s2, 125")
    e("s_cselect_b32 s%d, 1, s%d" % (S_T3, S_T3))
    e("s_and_b32 s%d, s%d, 3" % (S_T2, S_WAVE))
    e("s_cmp_eq_u32 s%d, 0" % S_T2)
    e("s_cselect_b32 s%d, s%d, 0" % (S_T3, S_T3))
    e("s_mul_i32 s%d, s%d, %d" % (S_T0, S_WAVE, PIECE))
    e("s_lshl_b32 s%d, s%d, 12" % (S_T1, S_WAVE))
    e("s_add_u32 s%d, s%d, s%d" % (S_T1, S_T1, S_G0))
    e("s_sub_u32 s%d, s%d, 4096" % (S_T1, S_T1))
    e("s_lshr_b32 s%d, s%d, 2" % (S_ISL, S_WAVE))
    e("v_lshrrev_b32 v1, 4, v%d" % L)
    e("v_bfe_u32 v2, v%d, 2, 2" % L)
    e("v_and_b32 v3, 3, v%d" % L)
    e("v_and_b32 v4, 1, v1")
    e("v_lshlrev_b32 v5, 13, v1")
    e("v_lshl_add_u32 v5, v2, 10, v5")
    e("v_lshlrev_b32 v6, 1, v4")
    e("v_xor_b32 v6, v6, v3")
    e("v_lshl_add_u32 v5, v6, 4, v5")
    e("s_lshl_b32 s%d, s%d, 6" % (S_T2, S_WAVE))
    e("v_add_u32 v%d, s%d, v5" % (V_WD0, S_T2))
    e("v_add_u32 v%d, 0x1000, v%d" % (V_WD1, V_WD0))
    e("s_lshl_b32 s%d, s%d, 13" % (S_RING, S_WAVE))
    e("s_add_u32 s%d, s%d, %d" % (S_RING, S_RING, RING0))
    e("s_waitcnt lgkmcnt(0)")
    if opts.get("stamp"):
        e("s_mov_b32 s60, s58")
        e("s_mov_b32 s62, s50")
    pstamp(em, opts, 11)
    for (sr, p, nbytes) in ((S_X, 4, 16384000), (S_X0, 4, 16384000), (S_W, 6, 1310720), (S_WO, 8, 131072), (S_OUT, 10, 16384000)):
        e("s_mov_b32 s%d, s%d" % (sr, p))
        e("s_mov_b32 s%d, s%d" % (sr + 1, p + 1))
        e("s_mov_b32 s%d, %d" % (sr + 2, nbytes))
        e("s_mov_b32 s%d, 0x00020000" % (sr + 3))
    e("s_cmp_eq_u32 s%d, 1" % S_T3)
    e("s_cselect_b32 s%d, 0, s%d" % (S_X0 + 2, S_X0 + 2))
    e("s_mov_b32 m0, s%d" % S_T0)
    e("s_cmp_eq_u32 s%d, 4" % S_WAVE)
    e("s_cbranch_scc1 L_c0w4")
    em.vmop("buffer_load_dwordx4 v%d, %s, s%d offen lds" % (V_XD, srd(S_X0), S_T1), ("x",))
    e("s_branch L_c0b")
    em.label("L_c0w4")
    e("buffer_load_dwordx4 v%d, %s, s%d offen lds" % (V_XD, srd(S_X), S_T1))
    em.label("L_c0b")
    e("s_add_u32 m0, s%d, %d" % (S_T0, 8 * PIECE))
    e("s_add_u32 s%d, s%d, %d" % (S_T2, S_T1, 8 * 4096))
    em.vmop("buffer_load_dwordx4 v%d, %s, s%d offen lds" % (V_XD, srd(S_X), S_T2), ("x",))
    e("s_cmp_lg_u32 s%d, 7" % S_WAVE)
    e("s_cbranch_scc1 L_c0c")
    e("s_mov_b32 m0, %d" % (16 * PIECE))
    e("s_add_u32 s%d, s%d, %d" % (S_T2, S_G0, 15 * 4096))
    e("buffer_load_dwordx4 v%d, %s, s%d offen lds" % (V_XD, srd(S_X), S_T2))
    em.label("L_c0c")

    def soff_const(step):
        it, rel = divmod(step, 10)
        kh, tap = divmod(rel, 5)
        return it, tap * 262144 + kh * 32768

    def dma_items(step, u):
        fg, h = u >> 1, u & 1
        slot = (4 * step + u) % NRING
        m0 = ("op", "s_add_u32 m0, s%d, %d" % (S_RING, slot * 1024 - fg * 512)) if slot * 1024 - fg * 512 >= 0 else \
             ("op", "s_sub_u32 m0, s%d, %d" % (S_RING, fg * 512 - slot * 1024))
        d = ("vm", "buffer_load_dwordx4 v%d, %s, s%d offen offset:%d lds" % (
            V_WD1 if h else V_WD0, srd(S_W), S_SOFF, fg * 512), ("u", step, u))
        return m0, d

    def tr_items(step, u):
        fg, h = u >> 1, u & 1
        slot = (4 * step + u) % NRING
        ab = AREG + 16 * (step % 2)
        out = [("wvm", ("u", step, u))]
        for a01 in range(2):
            d = ab + 4 * (2 * fg + a01) + 2 * h
            out.append(("lg", "ds_read_b64_tr_b16 %s, v%d offset:%d" % (vr(d, 2), V_A1 if a01 else V_A0, slot * 1024),
                        ("a", step, u, a01)))
        return out

    def ring_fill(track):
        for st in range(2):
            e("s_mov_b32 s%d, %d" % (S_SOFF, soff_const(st)[1]))
            for u in range(4):
                m0, d = dma_items(st, u)
                em.item(m0)
                e("s_nop 0")
                if track:
                    em.item(d)
                else:
                    e(d[1])

    P64 = int(opts.get("p64", 0))
    PS = int(opts.get("ps", 9))
    PH = int(opts.get("ph", 5))
    QA = int(opts.get("qa", 5))
    e("s_lshr_b32 s%d, s2, 3" % S_I)
    e("s_and_b32 s%d, s%d, 3" % (S_T2, S_WAVE))
    e("s_cmp_eq_u32 s%d, 0" % S_ISL)
    e("s_cbranch_scc1 L_hpro")
    ring_fill(True)
    pstamp(em, opts, 12)
    e("s_branch L_ppro")

    def xchunk_items(lab):
        out = [("op", "s_add_u32 s%d, s%d, %d" % (S_XM, S_XM, CHUNK)),
               ("op", "s_add_u32 s%d, s%d, 128" % (S_XS, S_XS)),
               ("op", "s_add_u32 s%d, s%d, %d" % (S_X16M, S_X16M, CHUNK)),
               ("op", "s_add_u32 s%d, s%d, 128" % (S_X16S, S_X16S)),
               ("op", "s_add_u32 s%d, s%d, 1" % (S_XW, S_XW))]
        for i in range(4):
            out.append(("op", "s_add_u32 m0, s%d, %d" % (S_XM, 4 * i * PIECE)))
            out.append(("op", "s_add_u32 s%d, s%d, %d" % (S_T2, S_XS, 4 * i * 4096)))
            out.append(("op", "buffer_load_dwordx4 v%d, %s, s%d offen lds" % (V_XD, srd(S_X0 if i == 0 else S_X), S_T2)))
        out.append(("op", "s_mov_b32 m0, s%d" % S_X16M))
        out.append(("op", "s_cmp_lg_u32 s%d, s%d" % (S_WAVE, S_XW)))
        out.append(("op", "s_cbranch_scc1 %s" % lab))
        out.append(("op", "buffer_load_dwordx4 v%d, %s, s%d offen lds" % (V_XD, srd(S_X), S_X16S)))
        out.append(("lab", lab))
        if opts.get("nox"):
            out = [o for o in out if "buffer_load" not in o[1]]
        return out

    em.label("L_hpro")
    if opts.get("pf", 1):
        e("s_and_b32 s%d, s%d, 1" % (S_T0, S_T2))
        e("s_lshl_b32 s%d, s%d, 7" % (S_T0, S_T0))
        e("s_lshr_b32 s%d, s%d, 1" % (S_T1, S_T2))
        e("s_lshl_b32 s%d, s%d, 9" % (S_T1, S_T1))
        e("s_add_u32 s%d, s%d, s%d" % (S_T0, S_T0, S_T1))
        e("s_lshl_b32 s%d, s%d, 10" % (S_P0, S_I))
        e("s_add_u32 s%d, s%d, s%d" % (S_P0, S_P0, S_T0))
        e("s_add_u32 s%d, s%d, %d" % (S_P1, S_P0, 229376))
        e("s_add_u32 s%d, s%d, %d" % (S_P2, S_P0, 1048576))
        lst = []
        lq = list(range(2, 2 + PS))
        hq = list(range(0, PH))
        order = [(q, 1) for q in lq[:2]] + [(q, 0) for q in hq[:2]] + [(q, 1) for q in lq[2:4]] + [(q, 0) for q in hq[2:]] + [(q, 1) for q in lq[4:]]
        for (q, isl) in order:
            cs, tap = divmod(q, 5)
            c1 = tap * 262144 + cs * 32768 - q * 1024
            e("s_cmp_ge_u32 s%d, %d" % (S_I, q))
            if tap:
                imm = c1 - 229376
                e("s_cselect_b32 s%d, s%d, s%d" % (S_T0, S_P1, S_P0))
            else:
                imm = c1
                e("s_cselect_b32 s%d, s%d, s%d" % (S_T0, S_P0, S_P2))
            assert imm >= 0
            for hh in range(1 + P64):
                e("s_buffer_load_dword s%d, %s, s%d offset:%d" % (S_PD, srd(S_W), S_T0, imm + 256 * isl + 64 * hh))
    pstamp(em, opts, 12)
    em.label("L_ppro")
    pstamp(em, opts, 13)
    e("s_mul_i32 s%d, s%d, %d" % (S_XM, S_T2, PIECE))
    e("s_lshl_b32 s%d, s%d, 12" % (S_XS, S_T2))
    e("s_add_u32 s%d, s%d, s%d" % (S_XS, S_XS, S_G0))
    e("s_sub_u32 s%d, s%d, 4096" % (S_XS, S_XS))
    e("s_mov_b32 s%d, %d" % (S_X16M, 16 * PIECE))
    e("s_add_u32 s%d, s%d, %d" % (S_X16S, S_G0, 15 * 4096))
    e("s_mov_b32 s%d, 4" % S_XW)
    e("v_lshrrev_b32 v5, 3, v%d" % L)
    e("v_and_b32 v6, 7, v%d" % L)
    e("v_lshlrev_b32 v6, 7, v6")
    e("s_lshl_b32 s%d, s%d, 3" % (S_T0, S_T2))
    e("s_add_u32 s%d, s%d, %d" % (S_T0, S_T0, QA))
    for (dst, qadd) in ((V_PFA, None), (V_PFB, QA + 32)):
        if qadd is None:
            e("v_add_u32 v7, s%d, v5" % S_T0)
        else:
            e("v_add_u32 v7, %d, v5" % qadd)
        e("v_mul_u32_u24 v7, 31, v7")
        e("v_add_u32 v7, s%d, v7" % S_I)
        e("v_lshrrev_b32 v8, 5, v7")
        e("v_and_b32 v7, 31, v7")
        e("v_mul_u32_u24 v9, 13, v8")
        e("v_lshrrev_b32 v9, 6, v9")
        e("v_mul_u32_u24 v10, 5, v9")
        e("v_sub_u32 v8, v8, v10")
        e("v_lshlrev_b32 v8, 18, v8")
        e("v_lshl_add_u32 v8, v9, 15, v8")
        e("v_lshl_add_u32 v8, v7, 10, v8")
        e("v_add_u32 v%d, v8, v6" % dst)
    e("s_lshl_b32 s%d, s%d, 13" % (S_T0, S_I))
    e("v_lshlrev_b32 v5, 7, v%d" % L)
    e("v_add_u32 v%d, s%d, v5" % (V_PFC, S_T0))
    e("s_mov_b32 s%d, 0x%08x" % (S_C1, f32bits(-2.0 * 1.4426950408889634)))
    e("s_mov_b32 s%d, 0x%08x" % (S_C2, f32bits(-1.4426950408889634)))
    e("s_mov_b32 s%d, 0x%08x" % (S_CL, f32bits(30.0)))
    e("v_lshlrev_b32 v5, 8, v1")
    e("v_lshl_add_u32 v5, v2, 6, v5")
    e("v_lshl_add_u32 v6, v4, 5, v5")
    e("v_lshl_add_u32 v6, v3, 3, v6")
    e("v_add_u32 v%d, s%d, v6" % (V_A0, S_RING))
    e("v_xor_b32 v6, 32, v6")
    e("v_add_u32 v%d, s%d, v6" % (V_A1, S_RING))
    e("s_and_b32 s%d, s%d, 3" % (S_T2, S_WAVE))
    e("s_mul_i32 s%d, s%d, %d" % (S_WOR, S_T2, NWO * 1024))
    e("s_add_u32 s%d, s%d, %d" % (S_WOR, S_WOR, WOB))
    e("v_lshl_add_u32 v6, v3, 4, v5")
    e("v_add_u32 v%d, s%d, v6" % (V_OA, S_WOR))
    e("v_lshrrev_b32 v6, 2, v%d" % L)
    e("v_lshlrev_b32 v6, 9, v6")
    e("v_lshl_add_u32 v6, v3, 4, v6")
    e("s_lshl_b32 s%d, s%d, 7" % (S_T2, S_T2))
    e("v_add_u32 v%d, s%d, v6" % (V_WOD, S_T2))
    e("v_and_b32 v7, 15, v%d" % L)
    e("s_mov_b32 s%d, %d" % (S_T1, PIECE))
    e("v_mul_lo_u32 v5, v7, s%d" % S_T1)
    e("v_lshl_add_u32 v%d, v1, 4, v5" % V_X)
    e("v_lshlrev_b32 v5, 12, v7")
    e("v_lshl_add_u32 v5, v1, 4, v5")
    e("v_add_u32 v%d, s%d, v5" % (V_OUT, S_T2))
    e("v_lshlrev_b32 v5, 4, v%d" % L)
    e("v_add_u32 v%d, %d, v5" % (V_Z, RING0))
    e("v_add_u32 v%d, s%d, v5" % (V_ZW, S_RING))
    e("v_mov_b32 v%d, %d" % (V_FA, FLG))
    e("v_mov_b32 v%d, %d" % (V_FL, FLG + F_X + 4))
    e("v_mov_b32 v%d, 1" % V_ONE)
    e("v_mov_b32 v%d, %d" % (V_SG, FLG + F_X + 4))
    e("s_cmp_lg_u32 s%d, 4" % S_WAVE)
    e("s_cbranch_scc1 L_nofl")
    e("v_lshlrev_b32 v5, 2, v%d" % L)
    e("v_add_u32 v5, %d, v5" % FLG)
    e("v_cmp_eq_u32 vcc, 4, v%d" % L)
    e("v_mov_b32 v6, 0")
    e("s_nop 0")
    e("v_cndmask_b32 v6, v6, v%d, vcc" % L)
    e("ds_write_b32 v5, v6")
    em.label("L_nofl")
    for r in range(128):
        e("v_mov_b32 v%d, 0" % (ACC + r))
    e("s_mov_b32 s%d, s%d" % (S_HOOK, S_ISL))
    e("s_mov_b32 s%d, 0" % S_IT)
    e("s_mov_b32 s%d, 0" % S_CNT)
    pstamp(em, opts, 14)
    e("s_cmp_eq_u32 s%d, 0" % S_ISL)
    e("s_cbranch_scc1 L_hw")
    e("s_waitcnt vmcnt(8) lgkmcnt(0)")
    if XL > 0:
        e("s_setprio 3")
    else:
        e("s_setprio 1")
    e("s_branch L_bar")
    em.label("L_hw")
    e("s_waitcnt vmcnt(0)")
    e("s_setprio 2")
    em.label("L_bar")
    pstamp(em, opts, 15)
    em.vm = [t for t in em.vm if t != ("x",)]
    e("s_barrier")
    e("s_cmp_lg_u32 s%d, 0" % S_ISL)
    e("s_cbranch_scc1 L_nofill")
    ring_fill(False)
    em.label("L_nofill")
    stamp(em, opts, 3)
    pcollect(em, opts)

    slotkey = [None] * 8

    def bkey(step, j):
        cs, tap = divmod(step, 5)
        sidx = j - 2 * tap + 8
        return sidx & 7, (cs, sidx)

    def bread(step, j):
        slot, key = bkey(step, j)
        if slotkey[slot] == key:
            return None
        slotkey[slot] = key
        cs, tap = divmod(step, 5)
        sidx = j - 2 * tap + 8
        off = (sidx >> 3) * PIECE + (sidx & 7) * 128 + (cs & 1) * 64
        return ("lg", "ds_read_b128 %s, v%d offset:%d" % (vr(BREG + 4 * slot, 4), V_X, off), ("b", key))

    def soff_item(step, cur):
        it, c = soff_const(step)
        return ("op", "s_add_u32 s%d, s%d, %d" % (S_SOFF, S_IT, c + (it - cur) * 65536))

    for j in range(7, -1, -1):
        em.item(bread(0, j))
    em.item(soff_item(2, 0))
    for u in range(4):
        for it in tr_items(0, u):
            em.item(it)
    for u in range(4):
        m0, d = dma_items(2, u)
        em.item(m0)
        em.wait_lg(("a", 0, u, 1))
        e("s_nop 0")
        em.item(d)
    stamp(em, opts, 4)

    def hook(items, lab):
        return [("op", "s_cmp_eq_u32 s%d, 0" % S_HOOK), ("op", "s_cbranch_scc1 %s" % lab)] + items + [("lab", lab)]

    def signal(c):
        return [("op", "ds_add_u32 v%d, v%d offset:%d" % (V_FA, V_ONE, F_X + 4 * c))]

    def gstep(step):
        rel = step % 10
        cur = step // 10
        ab = AREG + 16 * (step % 2)
        gaps = [[] for _ in range(33)]
        gaps[0].append(soff_item(step + 3, cur))
        if rel == 7:
            gaps[0].append(("op", "s_cmp_eq_u32 s%d, 3" % S_CNT))
            gaps[0].append(("op", "s_cselect_b32 s%d, 0, s%d" % (S_W + 2, S_W + 2)))
        for u in range(4):
            for it in tr_items(step + 1, u):
                gaps[GR[u]].append(it)
            m0, d = dma_items(step + 3, u)
            gaps[GD[u] - 1].append(m0)
            gaps[GD[u]].append(("wlg", ("a", step + 1, u, 1)))
            gaps[GD[u]].append(d)
        sig = [("op", "s_mov_b64 exec, 1"),
               ("op", "ds_add_u32 v%d, v%d" % (V_SG, V_ONE)),
               ("op", "s_mov_b64 exec, -1"),
               ("op", "v_add_u32 v%d, 4, v%d" % (V_SG, V_SG))]

        def cpf(v, sr):
            return [("op", "buffer_load_dword v%d, v%d, %s, 0 offen offset:%d" % (V_DUMMY, v, srd(sr), 64 * hh)) for hh in range(1 + P64)] if (opts.get("pf", 1) and not opts.get("nocp")) else []
        if rel == H1:
            its = [("op", "s_cmp_eq_u32 s%d, 0" % S_CNT), ("op", "s_cbranch_scc1 L_h1a")] + sig + \
                  [("op", "s_branch L_h1b"), ("lab", "L_h1a")] + cpf(V_PFA, S_W) + [("lab", "L_h1b")] + xchunk_items("L_hx1")
            gaps[2] += hook(its, "L_hk1")
        if rel == H2:
            its = sig + [("op", "s_cmp_lg_u32 s%d, 0" % S_CNT), ("op", "s_cbranch_scc1 L_hk2")] + xchunk_items("L_hx2") + \
                  [("op", "s_cmp_lg_u32 s%d, 4" % S_WAVE), ("op", "s_cbranch_scc1 L_hk2")] + cpf(V_PFB, S_W) + cpf(V_PFC, S_WO)
            gaps[2] += hook(its, "L_hk2")
        if rel == 8:
            gaps[10].append(("lg", "ds_read_b32 v%d, v%d" % (V_F, V_FL), ("fl", step)))
        pre = []
        if rel == 9:
            pre = [("wlg", ("fl", step - 1)),
                   ("op", "v_readfirstlane_b32 s%d, v%d" % (S_T0, V_F)),
                   ("op", "v_add_u32 v%d, %d, v%d" % (V_X, CHUNK, V_X)),
                   ("op", "s_cmp_eq_u32 s%d, 4" % S_T0),
                   ("op", "s_cbranch_scc1 L_pok"),
                   ("lab", "L_pspin"),
                   ("op", "ds_read_b32 v%d, v%d" % (V_F, V_FL)),
                   ("op", "s_waitcnt lgkmcnt(0)"),
                   ("op", "v_readfirstlane_b32 s%d, v%d" % (S_T0, V_F)),
                   ("op", "s_cmp_eq_u32 s%d, 4" % S_T0),
                   ("op", "s_cbranch_scc0 L_pspin"),
                   ("lab", "L_pok"),
                   ("op", "v_add_u32 v%d, 4, v%d" % (V_FL, V_FL))]
        for it in pre:
            em.item(it)
        nxt = step + 1
        pending = {}
        for j2 in range(8):
            slot, key = bkey(nxt, j2)
            pending[slot] = j2
        k = 0
        for j in range(7, -1, -1):
            slot, key = bkey(step, j)
            em.wait_lg(("b", key))
            for a in range(4):
                em.wait_lg(("a", step, 2 * (a >> 1) + 1, a & 1))
                em.e("v_mfma_f32_16x16x32_bf16 %s, %s, %s, %s" % (
                    vr(acc(a, j), 4), vr(ab + 4 * a, 4), vr(BREG + 4 * slot, 4), vr(acc(a, j), 4)))
                if a == 3 and slot in pending:
                    it = bread(nxt, pending[slot])
                    if it:
                        em.item(it)
                for it in gaps[k]:
                    em.item(it)
                k += 1

    start = len(em.lines)
    for s in range(0, 10):
        gstep(s)
    mid = len(em.lines)
    for s in range(10, 20):
        gstep(s)
    end = len(em.lines)
    b1 = em.lines[start:mid]
    b2 = em.lines[mid:end]
    if b1 != b2:
        for x1, x2 in zip(b1, b2):
            if x1 != x2:
                print("DIFF", x1, "|", x2)
    assert b1 == b2, "loop body not steady"
    em.lines = em.lines[:start]
    if opts.get("nodma"):
        b1 = [l for l in b1 if not ("s[16:19]" in l) and "vmcnt" not in l]
    if opts.get("nomfma"):
        b1 = [l for l in b1 if "v_mfma" not in l]
    em.label("L_loop")
    em.lines += b1
    if opts.get("stamp") == 2:
        e("s_memtime s[80:81]")
        e("s_mov_b32 s71, s72")
        e("s_mov_b32 s72, s73")
        e("s_mov_b32 s73, s74")
        e("s_waitcnt lgkmcnt(0)")
        e("s_mov_b32 s74, s80")
    e("s_add_u32 s%d, s%d, 65536" % (S_IT, S_IT))
    e("s_add_u32 s%d, s%d, 1" % (S_CNT, S_CNT))
    e("s_cmp_eq_u32 s%d, 2" % S_CNT)
    e("s_cselect_b32 s%d, 0, s%d" % (S_HOOK, S_HOOK))
    if XL > 0:
        e("s_mul_i32 s%d, s%d, s%d" % (S_T0, S_CNT, S_ISL))
        e("s_cmp_lg_u32 s%d, %d" % (S_T0, XL))
        e("s_cbranch_scc1 L_nsp")
        e("s_setprio 1")
        em.label("L_nsp")
    e("s_cmp_lt_u32 s%d, 4" % S_CNT)
    e("s_cbranch_scc1 L_loop")
    e("s_waitcnt lgkmcnt(0)")
    em.lg = []
    stamp(em, opts, 5)
    e("s_cmp_lg_u32 s%d, 0" % S_ISL)
    e("s_cbranch_scc1 L_low")
    vm_after_loop = list(em.vm)

    e("s_setprio 0")

    def wo_dma(U):
        ks, u = divmod(U, 4)
        ch, h = u >> 1, u & 1
        slot = U % NWO
        off = slot * 1024 - ch * 64
        m0 = ("op", "s_add_u32 m0, s%d, %d" % (S_WOR, off)) if off >= 0 else ("op", "s_sub_u32 m0, s%d, %d" % (S_WOR, -off))
        so = ("op", "s_mov_b32 s%d, %d" % (S_SOFF, (32 * ks + 16 * h) * 512))
        d = ("vm", "buffer_load_dwordx4 v%d, %s, s%d offen offset:%d lds" % (V_WOD, srd(S_WO), S_SOFF, ch * 64), ("o", U))
        return [m0, so, d]

    def wo_tr(U):
        ks, u = divmod(U, 4)
        ch, h = u >> 1, u & 1
        slot = U % NWO
        ab = AREG + 16 * (ks % 4)
        out = [("wvm", ("o", U))]
        for a1 in range(2):
            d = ab + 4 * (2 * ch + a1) + 2 * h
            out.append(("lg", "ds_read_b64_tr_b16 %s, v%d offset:%d" % (vr(d, 2), V_OA, slot * 1024 + a1 * 8), ("oa", U, a1)))
        return out

    for U in range(NWO):
        for it in wo_dma(U):
            em.item(it)
    nextdma = NWO
    for t, j in enumerate(range(7, -1, -1)):
        zreg = BREG + 16 + 4 * (t % 4)
        gate_tile(em, j, zreg)
        if t == 0:
            em.wait_vm(vm_after_loop[-1])
        em.lgop("ds_write_b128 v%d, %s offset:%d" % (V_ZW, vr(zreg, 4), j * 1024), ("zw", j))
        if t >= 1:
            em.wait_lg(("oa", 2 * t - 1, 1))
            for U in (nextdma, nextdma + 1):
                for it in wo_dma(U):
                    em.item(it)
            nextdma += 2
        for U in (2 * t, 2 * t + 1):
            for it in wo_tr(U):
                em.item(it)
    e("s_mov_b64 exec, 1")
    em.lgop("ds_add_u32 v%d, v%d offset:%d" % (V_FA, V_ONE, F_ZH), ("zf",))
    e("s_mov_b64 exec, -1")
    em.wait_lg(("oa", 15, 1))
    for U in (nextdma, nextdma + 1):
        for it in wo_dma(U):
            em.item(it)
    nextdma += 2
    stamp(em, opts, 6)
    em.label("L_zhs")
    e("ds_read_b32 v%d, v%d offset:%d" % (V_F, V_FA, F_ZH))
    e("s_waitcnt lgkmcnt(0)")
    em.lg = []
    e("v_readfirstlane_b32 s%d, v%d" % (S_T0, V_F))
    e("s_cmp_eq_u32 s%d, 4" % S_T0)
    e("s_cbranch_scc0 L_zhs")
    if opts.get("hp2"):
        e("s_setprio 2")
    stamp(em, opts, 7)

    def zread(ks, j, slot):
        return ("lg", "ds_read_b128 %s, v%d offset:%d" % (vr(BREG + 4 * slot, 4), V_Z, ks * 8192 + j * 1024), ("z", ks, j))

    for j in range(7, -1, -1):
        em.item(zread(0, j, j))
    for ks in range(4):
        ab = AREG + 16 * ks
        gaps = [[] for _ in range(33)]
        if ks >= 1:
            for u in range(4):
                U = 4 * (ks + 3) + u
                for it in wo_tr(U):
                    gaps[8 * u].append(it)
                if nextdma < 32:
                    gaps[8 * u + 6].append(("wlg", ("oa", U, 1)))
                    for it in wo_dma(nextdma):
                        gaps[8 * u + 6].append(it)
                    nextdma += 1
        k = 0
        for j in range(7, -1, -1):
            em.wait_lg(("z", ks, j))
            for a in range(4):
                c = "0" if ks == 0 else vr(acc(a, j), 4)
                e("v_mfma_f32_16x16x32_bf16 %s, %s, %s, %s" % (vr(acc(a, j), 4), vr(ab + 4 * a, 4), vr(BREG + 4 * j, 4), c))
                if a == 3 and ks < 3:
                    em.item(zread(ks + 1, j, j))
                for it in gaps[k]:
                    em.item(it)
                k += 1
    assert nextdma == 32, nextdma
    for u in range(4):
        for it in wo_tr(28 + u):
            em.item(it)
    stamp(em, opts, 8)

    def epi(j, t):
        for ch in range(2):
            tt = V_DUMMY + 4 * ((2 * t + ch) % 4) if False else BREG + 0
            tt = 240 + 4 * ((2 * t + ch) % 4)
            for a1 in range(2):
                aa = acc(2 * ch + a1, j)
                e("v_cvt_pk_bf16_f32 v%d, v%d, v%d" % (tt + 2 * a1, aa, aa + 1))
                e("v_cvt_pk_bf16_f32 v%d, v%d, v%d" % (tt + 2 * a1 + 1, aa + 2, aa + 3))
            e("buffer_store_dwordx4 %s, v%d, %s, s%d offen offset:%d %s" % (
                vr(tt, 4), V_OUT, srd(S_OUT), S_G0, j * 512 + ch * 64, str(opts.get("sf", "")).replace("+", " ")))

    prev = None
    for t, j in enumerate(range(7, -1, -1)):
        sb = 4 * (t % 2)
        em.label("L_zl%d" % j)
        e("ds_read_b32 v%d, v%d offset:%d" % (V_F, V_FA, F_ZL + 4 * j))
        for k4 in range(4):
            e(zread(4 + k4, j, sb + k4)[1])
        if prev is not None:
            pass
        e("s_waitcnt lgkmcnt(0)")
        em.lg = []
        e("v_readfirstlane_b32 s%d, v%d" % (S_T0, V_F))
        e("s_cmp_eq_u32 s%d, 4" % S_T0)
        e("s_cbranch_scc0 L_zl%d" % j)
        for k4 in range(4):
            ab = AREG + 16 * k4
            for a in range(4):
                e("v_mfma_f32_16x16x32_bf16 %s, %s, %s, %s" % (vr(acc(a, j), 4), vr(ab + 4 * a, 4), vr(BREG + 4 * (sb + k4), 4), vr(acc(a, j), 4)))
        e("s_nop 7")
        epi(j, t)
    stamp(em, opts, 9)
    if opts.get("stamp"):
        e("s_waitcnt vmcnt(0)")
    stamp(em, opts, 10)
    stamp_out(em, opts)
    e("s_endpgm")

    em.label("L_low")
    em.vm = []
    em.lg = []
    e("s_setprio 3")
    for t, j in enumerate(range(7, -1, -1)):
        zreg = BREG + 16 + 4 * (t % 4)
        gate_tile(em, j, zreg)
        if t == 0:
            e("s_waitcnt vmcnt(0)")
        e("ds_write_b128 v%d, %s offset:%d" % (V_ZW, vr(zreg, 4), j * 1024))
        e("s_mov_b64 exec, 1")
        e("ds_add_u32 v%d, v%d offset:%d" % (V_FA, V_ONE, F_ZL + 4 * j))
        e("s_mov_b64 exec, -1")
    e("s_waitcnt lgkmcnt(0)")
    stamp(em, opts, 6)
    stamp_out(em, opts)
    em.label("L_end")
    e("s_endpgm")

    txt = HEADER % (LDS_TOTAL, NAME, NAME, NAME) + "\n".join(em.lines) + FOOTER % NAME
    return txt


if __name__ == "__main__":
    out = sys.argv[1] if len(sys.argv) > 1 else "cdna_kernels/%s.s" % NAME
    opts = {}
    for a in sys.argv[2:]:
        k, v = a.split("=")
        opts[k] = int(v) if v.isdigit() else v
    open(out, "w").write(build(opts))
    print("wrote", out)
```

```python
import sys
import struct

NAME = "standalone__autoregressive_conv_wavenet__speech"

HEADER = """; Kernarg layout for this problem (48 bytes, ptrs only, base s[0:1]):
; @launch grid=(250,1,1) block=(512,1,1) lds=%d
.amdgcn_target "amdgcn-amd-amdhsa--gfx950"
.text
.globl %s_kernel
.p2align 8
.type %s_kernel,@function
%s_kernel:
"""

FOOTER = """
.section .rodata,"a"
.p2align 6
.amdhsa_kernel %s_kernel
  .amdhsa_next_free_vgpr 256
  .amdhsa_next_free_sgpr 102
  .amdhsa_accum_offset 256
  .amdhsa_group_segment_fixed_size 0
  .amdhsa_kernarg_size 48
  .amdhsa_user_sgpr_count 2
  .amdhsa_user_sgpr_kernarg_segment_ptr 1
  .amdhsa_system_sgpr_workgroup_id_x 1
.end_amdhsa_kernel
"""

PIECE = 1056
CHUNK = 17 * PIECE
XBYTES = 4 * CHUNK
RING0 = XBYTES
NRING = 8
WOB = RING0 + 65536
NWO = 6
FLG = WOB + 4 * NWO * 1024
LDS_TOTAL = FLG + 256
F_X = 0
F_ZH = 32
F_ZL = 64


def f32bits(x):
    return struct.unpack("<I", struct.pack("<f", x))[0]


ACC = 0
BREG = 128
AREG = 160
(V_WD0, V_WD1, V_A0, V_A1, V_X, V_Z, V_ZW, V_WOD, V_OA, V_OUT, V_XD, V_FL, V_F, V_ONE, V_PF, V_FA) = range(224, 240)
V_DUMMY = 240
V_LANE = 244
V_PFA, V_PFB, V_PFC, V_SG = 245, 246, 247, 248

S_X, S_W, S_WO, S_OUT, S_X0 = 12, 16, 20, 24, 28
S_WAVE = 32
S_IT = 33
S_CNT = 34
S_SOFF = 35
S_T0, S_T1, S_T2, S_T3 = 36, 37, 38, 39
S_G0 = 40
S_RING = 41
S_C1, S_C2, S_CL = 42, 43, 44
S_HOOK = 45
S_XM = 48
S_XS = 49
S_WOR = 56
S_ISL = 57
S_HOOK2 = 90
S_I, S_P0, S_P1, S_P2, S_PD = 93, 94, 95, 96, 97


def acc(a, j):
    return ACC + (j * 4 + a) * 4


def vr(b, n):
    return "v[%d:%d]" % (b, b + n - 1)


def srd(b):
    return "s[%d:%d]" % (b, b + 3)


class Em:
    def __init__(self):
        self.lines = []
        self.vm = []
        self.lg = []
        self.nlab = 0

    def e(self, s):
        self.lines.append("    " + s)

    def label(self, s):
        self.lines.append(s + ":")

    def vmop(self, s, tag):
        self.e(s)
        self.vm.append(tag)

    def lgop(self, s, tag):
        self.e(s)
        self.lg.append(tag)

    def wait_vm(self, tag):
        if tag in self.vm:
            idx = len(self.vm) - 1 - self.vm[::-1].index(tag)
            n = len(self.vm) - 1 - idx
            self.e("s_waitcnt vmcnt(%d)" % min(n, 63))
            self.vm = self.vm[idx + 1:]

    def wait_lg(self, tag):
        if tag in self.lg:
            idx = len(self.lg) - 1 - self.lg[::-1].index(tag)
            n = len(self.lg) - 1 - idx
            self.e("s_waitcnt lgkmcnt(%d)" % min(n, 15))
            self.lg = self.lg[idx + 1:]

    def wait_all(self):
        self.e("s_waitcnt vmcnt(0) lgkmcnt(0)")
        self.vm = []
        self.lg = []

    def item(self, it):
        if it[0] == "op":
            self.e(it[1])
        elif it[0] == "lab":
            self.label(it[1])
        elif it[0] == "vm":
            self.vmop(it[1], it[2])
        elif it[0] == "lg":
            self.lgop(it[1], it[2])
        elif it[0] == "wvm":
            self.wait_vm(it[1])
        elif it[0] == "wlg":
            self.wait_lg(it[1])


def stamp(em, opts, k, real=False):
    if not opts.get("stamp"):
        return
    em.e("%s s[50:51]" % ("s_memrealtime" if real else "s_memtime"))
    em.e("s_waitcnt lgkmcnt(0)")
    em.lg = []
    em.e("s_mov_b32 s%d, s50" % (60 + k))


def pstamp(em, opts, k):
    if opts.get("stamp") != 1:
        return
    em.e("s_memtime s[%d:%d]" % (80 + 2 * (k - 11), 81 + 2 * (k - 11)))


def pcollect(em, opts):
    if opts.get("stamp") != 1:
        return
    for k in range(11, 16):
        em.e("s_mov_b32 s%d, s%d" % (60 + k, 80 + 2 * (k - 11)))


def stamp_out(em, opts):
    if not opts.get("stamp"):
        return
    stamp(em, opts, 1, real=True)
    e = em.e
    if opts.get("dbg"):
        stamp(em, opts, 15)
        e("s_load_dwordx2 s[52:53], s[0:1], 32")
        e("s_waitcnt lgkmcnt(0)")
        e("s_mov_b32 s54, 256")
        e("s_mov_b32 s55, 0x00020000")
        e("s_mov_b64 exec, 1")
        e("v_mov_b32 v250, 0")
        e("v_mov_b32 v251, s61")
        e("buffer_atomic_umax v251, v250, s[52:55], 0 offen offset:0")
        e("s_not_b32 s50, s60")
        e("v_mov_b32 v251, s50")
        e("buffer_atomic_umax v251, v250, s[52:55], 0 offen offset:4")
        e("s_sub_u32 s50, s75, s62")
        e("v_mov_b32 v251, s50")
        e("buffer_atomic_umax v251, v250, s[52:55], 0 offen offset:8")
        e("s_sub_u32 s50, s61, s60")
        e("v_mov_b32 v251, s50")
        e("buffer_atomic_umax v251, v250, s[52:55], 0 offen offset:12")
        e("s_lshl_b32 s50, s2, 3")
        e("s_add_u32 s50, s50, s%d" % S_WAVE)
        e("s_cmp_lg_u32 s50, 800")
        e("s_cbranch_scc1 L_dbgx%d" % em.nlab)
        for k in range(3, 15):
            e("s_sub_u32 s50, s%d, s62" % (60 + k))
            e("v_mov_b32 v251, s50")
            e("buffer_store_dword v251, v250, s[52:55], 0 offen offset:%d" % (4 * (k + 1)))
        em.label("L_dbgx%d" % em.nlab)
        em.nlab += 1
        return
    e("s_mov_b32 s52, s46")
    e("s_mov_b32 s53, s47")
    e("s_mov_b32 s54, 0x100000")
    e("s_mov_b32 s55, 0x00020000")
    e("s_lshl_b32 s50, s2, 3")
    e("s_add_u32 s50, s50, s%d" % S_WAVE)
    e("s_lshl_b32 s50, s50, 6")
    e("s_mov_b64 exec, 1")
    e("v_mov_b32 v250, 0")
    for k in range(16):
        e("v_mov_b32 v251, s%d" % (60 + k))
        e("buffer_store_dword v251, v250, s[52:55], s50 offen offset:%d" % (4 * k))


def gate_tile(em, j, zreg):
    T = BREG
    for a01 in range(2):
        f = acc(a01, j)
        g = acc(2 + a01, j)
        t1 = [T + 0 + r for r in range(4)]
        t2 = [T + 4 + r for r in range(4)]
        d1 = [T + 8 + r for r in range(4)]
        zz = [T + 12 + r for r in range(4)]
        for r in range(4):
            em.e("v_mul_f32 v%d, s%d, v%d" % (t1[r], S_C1, f + r))
        for r in range(4):
            em.e("v_mul_f32 v%d, s%d, v%d" % (t2[r], S_C2, g + r))
        for r in range(4):
            em.e("v_min_f32 v%d, s%d, v%d" % (t1[r], S_CL, t1[r]))
        for r in range(4):
            em.e("v_exp_f32 v%d, v%d" % (t2[r], t2[r]))
        for r in range(4):
            em.e("v_exp_f32 v%d, v%d" % (t1[r], t1[r]))
        em.e("s_nop 0")
        for r in range(4):
            em.e("v_add_f32 v%d, 1.0, v%d" % (d1[r], t1[r]))
        for r in range(4):
            em.e("v_fma_f32 v%d, v%d, v%d, v%d" % (d1[r], d1[r], t2[r], d1[r]))
        for r in range(4):
            em.e("v_rcp_f32 v%d, v%d" % (d1[r], d1[r]))
        for r in range(4):
            em.e("v_sub_f32 v%d, 1.0, v%d" % (t1[r], t1[r]))
        for r in range(4):
            em.e("v_mul_f32 v%d, v%d, v%d" % (zz[r], t1[r], d1[r]))
        em.e("v_cvt_pk_bf16_f32 v%d, v%d, v%d" % (zreg + 2 * a01, zz[0], zz[1]))
        em.e("v_cvt_pk_bf16_f32 v%d, v%d, v%d" % (zreg + 2 * a01 + 1, zz[2], zz[3]))


def build(opts):
    em = Em()
    e = em.e
    GR = [int(v) for v in str(opts.get("gr", "0,8,16,24")).split(",")]
    GD = [int(v) for v in str(opts.get("gd", "6,14,22,30")).split(",")]
    XL = int(opts.get("xl", 2))
    XR = [int(v) for v in str(opts.get("xr", "0,1,2,3,4")).split(",")]
    XG = [int(v) for v in str(opts.get("xg", "2,2,2,2,2")).split(",")]
    RS = int(opts.get("rs", 7))
    assert RS >= max(XR) + 3 or (RS == max(XR) + 2)
    e("s_cmp_ge_u32 s2, 250")
    e("s_cbranch_scc1 L_end")
    e("s_load_dwordx4 s[4:7], s[0:1], 0")
    e("s_load_dwordx4 s[8:11], s[0:1], 16")
    if opts.get("stamp"):
        e("s_load_dwordx2 s[46:47], s[0:1], 40")
        for k in range(16):
            e("s_mov_b32 s%d, 0" % (60 + k))
        e("s_memrealtime s[58:59]")
        e("s_memtime s[50:51]")
    e("v_and_b32 v0, 0x3ff, v0")
    e("v_lshrrev_b32 v1, 6, v0")
    e("v_and_b32 v%d, 63, v0" % V_LANE)
    e("v_readfirstlane_b32 s%d, v1" % S_WAVE)
    L = V_LANE
    e("v_lshrrev_b32 v5, 3, v%d" % L)
    e("v_lshlrev_b32 v5, 9, v5")
    e("v_and_b32 v6, 7, v%d" % L)
    e("v_lshl_add_u32 v%d, v6, 4, v5" % V_XD)
    e("s_lshl_b32 s%d, s2, 16" % S_G0)
    e("s_cmp_eq_u32 s2, 0")
    e("s_cselect_b32 s%d, 1, 0" % S_T3)
    e("s_cmp_eq_u32 s2, 125")
    e("s_cselect_b32 s%d, 1, s%d" % (S_T3, S_T3))
    e("s_and_b32 s%d, s%d, 3" % (S_T2, S_WAVE))
    e("s_cmp_eq_u32 s%d, 0" % S_T2)
    e("s_cselect_b32 s%d, s%d, 0" % (S_T3, S_T3))
    e("s_mul_i32 s%d, s%d, %d" % (S_XM, S_T2, PIECE))
    e("s_lshl_b32 s%d, s%d, 12" % (S_XS, S_T2))
    e("s_add_u32 s%d, s%d, s%d" % (S_XS, S_XS, S_G0))
    e("s_sub_u32 s%d, s%d, 4096" % (S_XS, S_XS))
    e("s_lshr_b32 s%d, s%d, 2" % (S_ISL, S_WAVE))
    e("v_lshrrev_b32 v1, 4, v%d" % L)
    e("v_bfe_u32 v2, v%d, 2, 2" % L)
    e("v_and_b32 v3, 3, v%d" % L)
    e("v_and_b32 v4, 1, v1")
    e("v_lshlrev_b32 v5, 13, v1")
    e("v_lshl_add_u32 v5, v2, 10, v5")
    e("v_lshlrev_b32 v6, 1, v4")
    e("v_xor_b32 v6, v6, v3")
    e("v_lshl_add_u32 v5, v6, 4, v5")
    e("s_lshl_b32 s%d, s%d, 6" % (S_T0, S_WAVE))
    e("v_add_u32 v%d, s%d, v5" % (V_WD0, S_T0))
    e("v_add_u32 v%d, 0x1000, v%d" % (V_WD1, V_WD0))
    e("s_lshl_b32 s%d, s%d, 13" % (S_RING, S_WAVE))
    e("s_add_u32 s%d, s%d, %d" % (S_RING, S_RING, RING0))
    for (sr, p, nbytes) in ((S_X, 4, 16384000), (S_X0, 4, 16384000), (S_W, 6, 1310720), (S_WO, 8, 131072), (S_OUT, 10, 16384000)):
        e("s_mov_b32 s%d, %d" % (sr + 2, nbytes))
        e("s_mov_b32 s%d, 0x00020000" % (sr + 3))
    e("s_cmp_eq_u32 s%d, 1" % S_T3)
    e("s_cselect_b32 s%d, 0, s%d" % (S_X0 + 2, S_X0 + 2))
    e("s_waitcnt lgkmcnt(0)")
    if opts.get("stamp"):
        e("s_mov_b32 s60, s58")
        e("s_mov_b32 s62, s50")
    pstamp(em, opts, 11)
    for (sr, p) in ((S_X, 4), (S_X0, 4), (S_W, 6), (S_WO, 8), (S_OUT, 10)):
        e("s_mov_b64 s[%d:%d], s[%d:%d]" % (sr, sr + 1, p, p + 1))

    def xpiece(i):
        return [("op", "s_add_u32 m0, s%d, %d" % (S_XM, 4 * i * PIECE)),
                ("op", "s_add_u32 s%d, s%d, %d" % (S_T2, S_XS, 4 * i * 4096)),
                ("op", "buffer_load_dwordx4 v%d, %s, s%d offen lds" % (V_XD, srd(S_X0 if i == 0 else S_X), S_T2))]

    def soff_const(step):
        it, rel = divmod(step, 10)
        kh, tap = divmod(rel, 5)
        return it, tap * 262144 + kh * 32768

    def dma_items(step, u):
        fg, h = u >> 1, u & 1
        slot = (4 * step + u) % NRING
        m0 = ("op", "s_add_u32 m0, s%d, %d" % (S_RING, slot * 1024 - fg * 512)) if slot * 1024 - fg * 512 >= 0 else \
             ("op", "s_sub_u32 m0, s%d, %d" % (S_RING, fg * 512 - slot * 1024))
        d = ("vm", "buffer_load_dwordx4 v%d, %s, s%d offen offset:%d lds" % (
            V_WD1 if h else V_WD0, srd(S_W), S_SOFF, fg * 512), ("u", step, u))
        return m0, d

    def tr_items(step, u):
        fg, h = u >> 1, u & 1
        slot = (4 * step + u) % NRING
        ab = AREG + 16 * (step % 2)
        out = [("wvm", ("u", step, u))]
        for a01 in range(2):
            d = ab + 4 * (2 * fg + a01) + 2 * h
            out.append(("lg", "ds_read_b64_tr_b16 %s, v%d offset:%d" % (vr(d, 2), V_A1 if a01 else V_A0, slot * 1024),
                        ("a", step, u, a01)))
        return out

    def ring_fill(st, track=True):
        e("s_mov_b32 s%d, %d" % (S_SOFF, soff_const(st)[1]))
        for u in range(4):
            m0, d = dma_items(st, u)
            em.item(m0)
            e("s_nop 0")
            if track:
                em.item(d)
            else:
                e(d[1])

    LPRE = int(opts.get("lpre", 1))
    XPW = int(opts.get("xpw", 0))
    e("s_lshr_b32 s%d, s2, 3" % S_I)
    e("s_cmp_eq_u32 s%d, 0" % S_ISL)
    e("s_cbranch_scc1 L_hpro")
    for i in range(4):
        for it in xpiece(i):
            em.item(it)
    e("s_cmp_lg_u32 s%d, 4" % S_WAVE)
    e("s_cbranch_scc1 L_ppro")
    for it in xpiece(4):
        em.item(it)
    e("s_branch L_ppro")
    em.label("L_hpro")
    ring_fill(0)
    ring_fill(1)
    em.label("L_ppro")
    pstamp(em, opts, 12)
    e("s_and_b32 s%d, s%d, 3" % (S_T2, S_WAVE))
    SPF = str(opts.get("spf", ""))
    if SPF:
        e("s_and_b32 s%d, s%d, 1" % (S_T0, S_T2))
        e("s_lshl_b32 s%d, s%d, 7" % (S_T0, S_T0))
        e("s_lshr_b32 s%d, s%d, 1" % (S_T1, S_T2))
        e("s_lshl_b32 s%d, s%d, 9" % (S_T1, S_T1))
        e("s_add_u32 s%d, s%d, s%d" % (S_T0, S_T0, S_T1))
        e("s_lshl_b32 s%d, s%d, 8" % (S_T1, S_ISL))
        e("s_add_u32 s%d, s%d, s%d" % (S_T0, S_T0, S_T1))
        e("s_lshl_b32 s%d, s%d, 10" % (S_P0, S_I))
        e("s_add_u32 s%d, s%d, s%d" % (S_P0, S_P0, S_T0))
        e("s_add_u32 s%d, s%d, %d" % (S_P1, S_P0, 229376))
        e("s_add_u32 s%d, s%d, %d" % (S_P2, S_P0, 1048576))
        q0, q1 = [int(v) for v in SPF.split("-")]
        for q in range(q0, q1):
            cs, tap = divmod(q, 5)
            c1 = tap * 262144 + cs * 32768 - q * 1024
            e("s_cmp_ge_u32 s%d, %d" % (S_I, q))
            if tap:
                imm = c1 - 229376
                e("s_cselect_b32 s%d, s%d, s%d" % (S_T0, S_P1, S_P0))
            else:
                imm = c1
                e("s_cselect_b32 s%d, s%d, s%d" % (S_T0, S_P0, S_P2))
            assert imm >= 0
            e("s_buffer_load_dword s%d, %s, s%d offset:%d" % (S_PD, srd(S_W), S_T0, imm))
    pstamp(em, opts, 13)
    e("s_add_u32 s%d, s%d, 1" % (S_T0, S_ISL))
    e("s_mul_i32 s%d, s%d, %d" % (S_T1, S_T0, CHUNK))
    e("s_add_u32 s%d, s%d, s%d" % (S_XM, S_XM, S_T1))
    e("s_lshl_b32 s%d, s%d, 7" % (S_T1, S_T0))
    e("s_add_u32 s%d, s%d, s%d" % (S_XS, S_XS, S_T1))
    e("s_lshl_b32 s%d, s%d, 2" % (S_T1, S_T0))
    e("s_add_u32 s%d, s%d, %d" % (S_T1, S_T1, FLG + F_X))
    e("v_mov_b32 v%d, s%d" % (V_SG, S_T1))
    e("s_mov_b32 s%d, 1" % S_HOOK)
    e("s_cmp_eq_u32 s%d, 0" % S_T2)
    e("s_cselect_b32 s%d, 1, 0" % S_HOOK2)
    XPF = int(opts.get("xpf", 0))
    if XPF:
        e("s_mul_i32 s%d, s%d, %d" % (S_T0, S_T2, 34 * 512))
        e("s_add_u32 s%d, s%d, s%d" % (S_T0, S_T0, S_G0))
        e("s_sub_u32 s%d, s%d, %d" % (S_T0, S_T0, 4096 - 128))
        for k, dst in ((0, V_PFA), (1, V_PFB)):
            e("v_add_u32 v5, %d, v%d" % (64 * k, L))
            e("v_mul_u32_u24 v6, 0x788, v5")
            e("v_lshrrev_b32 v6, 16, v6")
            e("v_mul_u32_u24 v7, 34, v6")
            e("v_sub_u32 v7, v5, v7")
            e("v_lshlrev_b32 v7, 9, v7")
            e("v_lshl_add_u32 v7, v6, 7, v7")
            e("v_add_u32 v7, s%d, v7" % S_T0)
            e("v_max_i32 v7, 0, v7")
            e("v_cmp_gt_u32 vcc, 102, v5")
            e("v_mov_b32 v6, 0x7fffff00")
            e("v_cndmask_b32 v%d, v6, v7, vcc" % dst)

    def xprefetch():
        n = 0
        for v in (V_PFA, V_PFB):
            for hh in range(XPF):
                e("buffer_load_dword v%d, v%d, %s, 0 offen offset:%d" % (V_DUMMY, v, srd(S_X), 64 * hh))
                n += 1
        return n
    e("s_lshl_b32 s%d, s%d, 13" % (S_T0, S_I))
    e("v_lshlrev_b32 v5, 7, v%d" % L)
    e("v_add_u32 v%d, s%d, v5" % (V_PFC, S_T0))
    e("s_mov_b32 s%d, 0x%08x" % (S_C1, f32bits(-2.0 * 1.4426950408889634)))
    e("s_mov_b32 s%d, 0x%08x" % (S_C2, f32bits(-1.4426950408889634)))
    e("s_mov_b32 s%d, 0x%08x" % (S_CL, f32bits(30.0)))
    e("v_lshlrev_b32 v5, 8, v1")
    e("v_lshl_add_u32 v5, v2, 6, v5")
    e("v_lshl_add_u32 v6, v4, 5, v5")
    e("v_lshl_add_u32 v6, v3, 3, v6")
    e("v_add_u32 v%d, s%d, v6" % (V_A0, S_RING))
    e("v_xor_b32 v6, 32, v6")
    e("v_add_u32 v%d, s%d, v6" % (V_A1, S_RING))
    e("s_and_b32 s%d, s%d, 3" % (S_T2, S_WAVE))
    e("s_mul_i32 s%d, s%d, %d" % (S_WOR, S_T2, NWO * 1024))
    e("s_add_u32 s%d, s%d, %d" % (S_WOR, S_WOR, WOB))
    e("v_lshl_add_u32 v6, v3, 4, v5")
    e("v_add_u32 v%d, s%d, v6" % (V_OA, S_WOR))
    e("v_lshrrev_b32 v6, 2, v%d" % L)
    e("v_lshlrev_b32 v6, 9, v6")
    e("v_lshl_add_u32 v6, v3, 4, v6")
    e("s_lshl_b32 s%d, s%d, 7" % (S_T2, S_T2))
    e("v_add_u32 v%d, s%d, v6" % (V_WOD, S_T2))
    e("v_and_b32 v7, 15, v%d" % L)
    e("s_mov_b32 s%d, %d" % (S_T1, PIECE))
    e("v_mul_lo_u32 v5, v7, s%d" % S_T1)
    e("v_lshl_add_u32 v%d, v1, 4, v5" % V_X)
    e("v_lshlrev_b32 v5, 12, v7")
    e("v_lshl_add_u32 v5, v1, 4, v5")
    e("v_add_u32 v%d, s%d, v5" % (V_OUT, S_T2))
    e("v_lshlrev_b32 v5, 4, v%d" % L)
    e("v_add_u32 v%d, %d, v5" % (V_Z, RING0))
    e("v_add_u32 v%d, s%d, v5" % (V_ZW, S_RING))
    e("v_mov_b32 v%d, %d" % (V_FA, FLG))
    e("v_mov_b32 v%d, %d" % (V_FL, FLG + F_X + 4))
    e("v_mov_b32 v%d, 1" % V_ONE)
    e("s_cmp_lg_u32 s%d, 4" % S_WAVE)
    e("s_cbranch_scc1 L_nofl")
    e("v_lshlrev_b32 v5, 2, v%d" % L)
    e("v_add_u32 v5, %d, v5" % FLG)
    e("v_cmp_eq_u32 vcc, 4, v%d" % L)
    e("v_mov_b32 v6, 0")
    e("s_nop 0")
    e("v_cndmask_b32 v6, v6, v%d, vcc" % L)
    e("ds_write_b32 v5, v6")
    em.label("L_nofl")
    for r in range(128):
        e("v_mov_b32 v%d, 0" % (ACC + r))
    e("s_mov_b32 s%d, 0" % S_IT)
    e("s_mov_b32 s%d, 0" % S_CNT)
    pstamp(em, opts, 14)

    def soff_item(step, cur):
        it, c = soff_const(step)
        return ("op", "s_add_u32 s%d, s%d, %d" % (S_SOFF, S_IT, c + (it - cur) * 65536))

    def cold_a():
        em.item(soff_item(2, 0))
        for u in range(4):
            for it in tr_items(0, u):
                em.item(it)
        for u in range(4):
            m0, d = dma_items(2, u)
            em.item(m0)
            em.wait_lg(("a", 0, u, 1))
            e("s_nop 0")
            em.item(d)

    e("s_setprio 3")
    e("s_cmp_eq_u32 s%d, 0" % S_ISL)
    e("s_cbranch_scc1 L_hw")
    for st in range(LPRE):
        ring_fill(st, False)
    npf = xprefetch() if XPW == 0 else 0
    e("s_waitcnt vmcnt(%d) lgkmcnt(0)" % (4 * LPRE + npf))
    e("s_barrier")
    for st in range(LPRE, 2):
        ring_fill(st, False)
    if XPW == 1:
        xprefetch()
    sv = (list(em.vm), list(em.lg))
    cold_a()
    em.vm, em.lg = sv
    if XPW == 2:
        xprefetch()
    e("s_branch L_bar")
    em.label("L_hw")
    cold_a()
    pstamp(em, opts, 15)
    e("s_barrier")
    em.label("L_bar")
    stamp(em, opts, 3)
    pcollect(em, opts)

    slotkey = [None] * 8

    def bkey(step, j):
        cs, tap = divmod(step, 5)
        sidx = j - 2 * tap + 8
        return sidx & 7, (cs, sidx)

    def bread(step, j):
        slot, key = bkey(step, j)
        if slotkey[slot] == key:
            return None
        slotkey[slot] = key
        cs, tap = divmod(step, 5)
        sidx = j - 2 * tap + 8
        off = (sidx >> 3) * PIECE + (sidx & 7) * 128 + (cs & 1) * 64
        return ("lg", "ds_read_b128 %s, v%d offset:%d" % (vr(BREG + 4 * slot, 4), V_X, off), ("b", key))

    for j in range(7, -1, -1):
        em.item(bread(0, j))
    e("s_waitcnt lgkmcnt(6)")
    em.lg = em.lg[-6:]
    stamp(em, opts, 4)

    def hook(items, lab):
        return [("op", "s_cmp_eq_u32 s%d, 0" % S_HOOK), ("op", "s_cbranch_scc1 %s" % lab)] + items + [("lab", lab)]

    def signal(c):
        return [("op", "ds_add_u32 v%d, v%d offset:%d" % (V_FA, V_ONE, F_X + 4 * c))]

    def gstep(step):
        rel = step % 10
        cur = step // 10
        ab = AREG + 16 * (step % 2)
        gaps = [[] for _ in range(33)]
        gaps[0].append(soff_item(step + 3, cur))
        if rel == 7:
            gaps[0].append(("op", "s_cmp_eq_u32 s%d, 3" % S_CNT))
            gaps[0].append(("op", "s_cselect_b32 s%d, 0, s%d" % (S_W + 2, S_W + 2)))
        for u in range(4):
            for it in tr_items(step + 1, u):
                gaps[GR[u]].append(it)
            m0, d = dma_items(step + 3, u)
            gaps[GD[u] - 1].append(m0)
            gaps[GD[u]].append(("wlg", ("a", step + 1, u, 1)))
            gaps[GD[u]].append(d)
        sig = [("op", "s_mov_b64 exec, 1"),
               ("op", "ds_add_u32 v%d, v%d" % (V_SG, V_ONE)),
               ("op", "s_mov_b64 exec, -1")]
        for i in range(5):
            if XR[i] == rel and not opts.get("nox"):
                lab = "L_hx%d" % i
                gaps[XG[i]] += [("op", "s_cmp_eq_u32 s%d, 0" % (S_HOOK2 if i == 4 else S_HOOK)), ("op", "s_cbranch_scc1 %s" % lab)] + xpiece(i) + [("lab", lab)]
        if rel == RS:
            gaps[2] += hook(sig, "L_hsig")
        if rel == 8:
            gaps[10].append(("lg", "ds_read_b32 v%d, v%d" % (V_F, V_FL), ("fl", step)))
        pre = []
        if rel == 9:
            pre = [("wlg", ("fl", step - 1)),
                   ("op", "v_readfirstlane_b32 s%d, v%d" % (S_T0, V_F)),
                   ("op", "v_add_u32 v%d, %d, v%d" % (V_X, CHUNK, V_X)),
                   ("op", "s_cmp_eq_u32 s%d, 4" % S_T0),
                   ("op", "s_cbranch_scc1 L_pok"),
                   ("lab", "L_pspin"),
                   ("op", "ds_read_b32 v%d, v%d" % (V_F, V_FL)),
                   ("op", "s_waitcnt lgkmcnt(0)"),
                   ("op", "v_readfirstlane_b32 s%d, v%d" % (S_T0, V_F)),
                   ("op", "s_cmp_eq_u32 s%d, 4" % S_T0),
                   ("op", "s_cbranch_scc0 L_pspin"),
                   ("lab", "L_pok"),
                   ("op", "v_add_u32 v%d, 4, v%d" % (V_FL, V_FL))]
        for it in pre:
            em.item(it)
        nxt = step + 1
        pending = {}
        for j2 in range(8):
            slot, key = bkey(nxt, j2)
            pending[slot] = j2
        k = 0
        for j in range(7, -1, -1):
            slot, key = bkey(step, j)
            em.wait_lg(("b", key))
            for a in range(4):
                em.wait_lg(("a", step, 2 * (a >> 1) + 1, a & 1))
                em.e("v_mfma_f32_16x16x32_bf16 %s, %s, %s, %s" % (
                    vr(acc(a, j), 4), vr(ab + 4 * a, 4), vr(BREG + 4 * slot, 4), vr(acc(a, j), 4)))
                if a == 3 and slot in pending:
                    it = bread(nxt, pending[slot])
                    if it:
                        em.item(it)
                for it in gaps[k]:
                    em.item(it)
                k += 1

    start = len(em.lines)
    for s in range(0, 10):
        gstep(s)
    mid = len(em.lines)
    for s in range(10, 20):
        gstep(s)
    end = len(em.lines)
    b1 = em.lines[start:mid]
    b2 = em.lines[mid:end]
    if b1 != b2:
        import difflib
        for l in difflib.unified_diff(b1, b2, lineterm="", n=0):
            print("DIFF", l)
    b1 = b2
    em.lines = em.lines[:start]
    if opts.get("nodma"):
        b1 = [l for l in b1 if not ("s[16:19]" in l) and "vmcnt" not in l]
    if opts.get("nomfma"):
        b1 = [l for l in b1 if "v_mfma" not in l]
    em.label("L_loop")
    em.lines += b1
    if opts.get("stamp") == 2:
        e("s_memtime s[80:81]")
        e("s_mov_b32 s71, s72")
        e("s_mov_b32 s72, s73")
        e("s_mov_b32 s73, s74")
        e("s_waitcnt lgkmcnt(0)")
        e("s_mov_b32 s74, s80")
    e("s_add_u32 s%d, s%d, 65536" % (S_IT, S_IT))
    e("s_add_u32 s%d, s%d, 1" % (S_CNT, S_CNT))
    e("s_add_u32 s%d, s%d, %d" % (S_XM, S_XM, CHUNK))
    e("s_add_u32 s%d, s%d, 128" % (S_XS, S_XS))
    e("v_add_u32 v%d, 4, v%d" % (V_SG, V_SG))
    e("s_cmp_gt_u32 s%d, s%d" % (S_CNT, S_ISL))
    e("s_cselect_b32 s%d, 0, s%d" % (S_HOOK, S_HOOK))
    e("s_cselect_b32 s%d, 0, s%d" % (S_HOOK2, S_HOOK2))
    e("s_mul_i32 s%d, s%d, %d" % (S_T0, S_ISL, XL - 1))
    e("s_add_u32 s%d, s%d, 1" % (S_T0, S_T0))
    e("s_cmp_lg_u32 s%d, s%d" % (S_T0, S_CNT))
    e("s_cbranch_scc1 L_nsp")
    e("s_setprio 2")
    e("s_cmp_eq_u32 s%d, 0" % S_ISL)
    e("s_cbranch_scc1 L_nsp")
    e("s_setprio 1")
    em.label("L_nsp")
    e("s_cmp_lt_u32 s%d, 4" % S_CNT)
    e("s_cbranch_scc1 L_loop")
    e("s_waitcnt lgkmcnt(0)")
    em.lg = []
    stamp(em, opts, 5)
    e("s_cmp_lg_u32 s%d, 0" % S_ISL)
    e("s_cbranch_scc1 L_low")
    vm_after_loop = list(em.vm)

    e("s_setprio 0")

    def wo_dma(U):
        ks, u = divmod(U, 4)
        ch, h = u >> 1, u & 1
        slot = U % NWO
        off = slot * 1024 - ch * 64
        m0 = ("op", "s_add_u32 m0, s%d, %d" % (S_WOR, off)) if off >= 0 else ("op", "s_sub_u32 m0, s%d, %d" % (S_WOR, -off))
        so = ("op", "s_mov_b32 s%d, %d" % (S_SOFF, (32 * ks + 16 * h) * 512))
        d = ("vm", "buffer_load_dwordx4 v%d, %s, s%d offen offset:%d lds" % (V_WOD, srd(S_WO), S_SOFF, ch * 64), ("o", U))
        return [m0, so, d]

    def wo_tr(U):
        ks, u = divmod(U, 4)
        ch, h = u >> 1, u & 1
        slot = U % NWO
        ab = AREG + 16 * (ks % 4)
        out = [("wvm", ("o", U))]
        for a1 in range(2):
            d = ab + 4 * (2 * ch + a1) + 2 * h
            out.append(("lg", "ds_read_b64_tr_b16 %s, v%d offset:%d" % (vr(d, 2), V_OA, slot * 1024 + a1 * 8), ("oa", U, a1)))
        return out

    for U in range(NWO):
        for it in wo_dma(U):
            em.item(it)
    nextdma = NWO
    for t, j in enumerate(range(7, -1, -1)):
        zreg = BREG + 16 + 4 * (t % 4)
        gate_tile(em, j, zreg)
        if t == 0:
            em.wait_vm(vm_after_loop[-1])
        em.lgop("ds_write_b128 v%d, %s offset:%d" % (V_ZW, vr(zreg, 4), j * 1024), ("zw", j))
        if t >= 1:
            em.wait_lg(("oa", 2 * t - 1, 1))
            for U in (nextdma, nextdma + 1):
                for it in wo_dma(U):
                    em.item(it)
            nextdma += 2
        for U in (2 * t, 2 * t + 1):
            for it in wo_tr(U):
                em.item(it)
    e("s_mov_b64 exec, 1")
    em.lgop("ds_add_u32 v%d, v%d offset:%d" % (V_FA, V_ONE, F_ZH), ("zf",))
    e("s_mov_b64 exec, -1")
    em.wait_lg(("oa", 15, 1))
    for U in (nextdma, nextdma + 1):
        for it in wo_dma(U):
            em.item(it)
    nextdma += 2
    stamp(em, opts, 6)
    em.label("L_zhs")
    e("ds_read_b32 v%d, v%d offset:%d" % (V_F, V_FA, F_ZH))
    e("s_waitcnt lgkmcnt(0)")
    em.lg = []
    e("v_readfirstlane_b32 s%d, v%d" % (S_T0, V_F))
    e("s_cmp_eq_u32 s%d, 4" % S_T0)
    e("s_cbranch_scc0 L_zhs")
    if opts.get("hp2"):
        e("s_setprio 2")
    stamp(em, opts, 7)

    def zread(ks, j, slot):
        return ("lg", "ds_read_b128 %s, v%d offset:%d" % (vr(BREG + 4 * slot, 4), V_Z, ks * 8192 + j * 1024), ("z", ks, j))

    for j in range(7, -1, -1):
        em.item(zread(0, j, j))
    for ks in range(4):
        ab = AREG + 16 * ks
        gaps = [[] for _ in range(33)]
        if ks >= 1:
            for u in range(4):
                U = 4 * (ks + 3) + u
                for it in wo_tr(U):
                    gaps[8 * u].append(it)
                if nextdma < 32:
                    gaps[8 * u + 6].append(("wlg", ("oa", U, 1)))
                    for it in wo_dma(nextdma):
                        gaps[8 * u + 6].append(it)
                    nextdma += 1
        k = 0
        for j in range(7, -1, -1):
            em.wait_lg(("z", ks, j))
            for a in range(4):
                c = "0" if ks == 0 else vr(acc(a, j), 4)
                e("v_mfma_f32_16x16x32_bf16 %s, %s, %s, %s" % (vr(acc(a, j), 4), vr(ab + 4 * a, 4), vr(BREG + 4 * j, 4), c))
                if a == 3 and ks < 3:
                    em.item(zread(ks + 1, j, j))
                for it in gaps[k]:
                    em.item(it)
                k += 1
    assert nextdma == 32, nextdma
    for u in range(4):
        for it in wo_tr(28 + u):
            em.item(it)
    stamp(em, opts, 8)

    def epi(j, t):
        for ch in range(2):
            tt = V_DUMMY + 4 * ((2 * t + ch) % 4) if False else BREG + 0
            tt = 240 + 4 * ((2 * t + ch) % 4)
            for a1 in range(2):
                aa = acc(2 * ch + a1, j)
                e("v_cvt_pk_bf16_f32 v%d, v%d, v%d" % (tt + 2 * a1, aa, aa + 1))
                e("v_cvt_pk_bf16_f32 v%d, v%d, v%d" % (tt + 2 * a1 + 1, aa + 2, aa + 3))
            e("buffer_store_dwordx4 %s, v%d, %s, s%d offen offset:%d %s" % (
                vr(tt, 4), V_OUT, srd(S_OUT), S_G0, j * 512 + ch * 64, str(opts.get("sf", "")).replace("+", " ")))

    prev = None
    for t, j in enumerate(range(7, -1, -1)):
        sb = 4 * (t % 2)
        em.label("L_zl%d" % j)
        e("ds_read_b32 v%d, v%d offset:%d" % (V_F, V_FA, F_ZL + 4 * j))
        for k4 in range(4):
            e(zread(4 + k4, j, sb + k4)[1])
        if prev is not None:
            pass
        e("s_waitcnt lgkmcnt(0)")
        em.lg = []
        e("v_readfirstlane_b32 s%d, v%d" % (S_T0, V_F))
        e("s_cmp_eq_u32 s%d, 4" % S_T0)
        e("s_cbranch_scc0 L_zl%d" % j)
        for k4 in range(4):
            ab = AREG + 16 * k4
            for a in range(4):
                e("v_mfma_f32_16x16x32_bf16 %s, %s, %s, %s" % (vr(acc(a, j), 4), vr(ab + 4 * a, 4), vr(BREG + 4 * (sb + k4), 4), vr(acc(a, j), 4)))
        e("s_nop 7")
        epi(j, t)
    stamp(em, opts, 9)
    if opts.get("stamp"):
        e("s_waitcnt vmcnt(0)")
    stamp(em, opts, 10)
    stamp_out(em, opts)
    e("s_endpgm")

    em.label("L_low")
    em.vm = []
    em.lg = []
    e("s_setprio 3")
    for t, j in enumerate(range(7, -1, -1)):
        zreg = BREG + 16 + 4 * (t % 4)
        gate_tile(em, j, zreg)
        if t == 0:
            e("s_waitcnt vmcnt(0)")
        e("ds_write_b128 v%d, %s offset:%d" % (V_ZW, vr(zreg, 4), j * 1024))
        e("s_mov_b64 exec, 1")
        e("ds_add_u32 v%d, v%d offset:%d" % (V_FA, V_ONE, F_ZL + 4 * j))
        e("s_mov_b64 exec, -1")
    e("s_waitcnt lgkmcnt(0)")
    stamp(em, opts, 6)
    stamp_out(em, opts)
    em.label("L_end")
    e("s_endpgm")

    txt = HEADER % (LDS_TOTAL, NAME, NAME, NAME) + "\n".join(em.lines) + FOOTER % NAME
    return txt


if __name__ == "__main__":
    out = sys.argv[1] if len(sys.argv) > 1 else "cdna_kernels/%s.s" % NAME
    opts = {}
    for a in sys.argv[2:]:
        k, v = a.split("=")
        opts[k] = int(v) if v.isdigit() else v
    open(out, "w").write(build(opts))
    print("wrote", out)
```

```python
import sys
import struct

NAME = "standalone__autoregressive_conv_wavenet__speech"

HEADER = """; Kernarg layout for this problem (48 bytes, ptrs only, base s[0:1]):
; @launch grid=(250,1,1) block=(512,1,1) lds=%d
.amdgcn_target "amdgcn-amd-amdhsa--gfx950"
.text
.globl %s_kernel
.p2align 8
.type %s_kernel,@function
%s_kernel:
"""

FOOTER = """
.section .rodata,"a"
.p2align 6
.amdhsa_kernel %s_kernel
  .amdhsa_next_free_vgpr 256
  .amdhsa_next_free_sgpr 102
  .amdhsa_accum_offset 256
  .amdhsa_group_segment_fixed_size 0
  .amdhsa_kernarg_size 48
  .amdhsa_user_sgpr_count 2
  .amdhsa_user_sgpr_kernarg_segment_ptr 1
  .amdhsa_system_sgpr_workgroup_id_x 1
.end_amdhsa_kernel
"""

PIECE = 1056
CHUNK = 17 * PIECE
XBYTES = 4 * CHUNK
RING0 = XBYTES
NRING = 8
WOB = RING0 + 65536
NWO = 6
FLG = WOB + 4 * NWO * 1024
LDS_TOTAL = FLG + 256
F_X = 0
F_ZH = 32
F_ZL = 64


def f32bits(x):
    return struct.unpack("<I", struct.pack("<f", x))[0]


ACC = 0
BREG = 128
AREG = 160
(V_WD0, V_WD1, V_A0, V_A1, V_X, V_Z, V_ZW, V_WOD, V_OA, V_OUT, V_XD, V_FL, V_F, V_ONE, V_PF, V_FA) = range(224, 240)
V_DUMMY = 240
V_LANE = 244
V_PFA, V_PFB, V_PFC, V_SG = 245, 246, 247, 248

S_X, S_W, S_WO, S_OUT, S_X0 = 12, 16, 20, 24, 28
S_WAVE = 32
S_IT = 33
S_CNT = 34
S_SOFF = 35
S_T0, S_T1, S_T2, S_T3 = 36, 37, 38, 39
S_G0 = 40
S_RING = 41
S_C1, S_C2, S_CL = 42, 43, 44
S_HOOK = 45
S_XM = 48
S_XS = 49
S_WOR = 56
S_ISL = 57
S_HOOK2 = 90
S_I, S_P0, S_P1, S_P2, S_PD = 93, 94, 95, 96, 97


def acc(a, j):
    return ACC + (j * 4 + a) * 4


def vr(b, n):
    return "v[%d:%d]" % (b, b + n - 1)


def srd(b):
    return "s[%d:%d]" % (b, b + 3)


class Em:
    def __init__(self):
        self.lines = []
        self.vm = []
        self.lg = []
        self.nlab = 0

    def e(self, s):
        self.lines.append("    " + s)

    def label(self, s):
        self.lines.append(s + ":")

    def vmop(self, s, tag):
        self.e(s)
        self.vm.append(tag)

    def lgop(self, s, tag):
        self.e(s)
        self.lg.append(tag)

    def wait_vm(self, tag):
        if tag in self.vm:
            idx = len(self.vm) - 1 - self.vm[::-1].index(tag)
            n = len(self.vm) - 1 - idx
            self.e("s_waitcnt vmcnt(%d)" % min(n, 63))
            self.vm = self.vm[idx + 1:]

    def wait_lg(self, tag):
        if tag in self.lg:
            idx = len(self.lg) - 1 - self.lg[::-1].index(tag)
            n = len(self.lg) - 1 - idx
            self.e("s_waitcnt lgkmcnt(%d)" % min(n, 15))
            self.lg = self.lg[idx + 1:]

    def wait_all(self):
        self.e("s_waitcnt vmcnt(0) lgkmcnt(0)")
        self.vm = []
        self.lg = []

    def item(self, it):
        if it[0] == "op":
            self.e(it[1])
        elif it[0] == "lab":
            self.label(it[1])
        elif it[0] == "vm":
            self.vmop(it[1], it[2])
        elif it[0] == "lg":
            self.lgop(it[1], it[2])
        elif it[0] == "wvm":
            self.wait_vm(it[1])
        elif it[0] == "wlg":
            self.wait_lg(it[1])


def stamp(em, opts, k, real=False):
    if not opts.get("stamp"):
        return
    em.e("%s s[50:51]" % ("s_memrealtime" if real else "s_memtime"))
    em.e("s_waitcnt lgkmcnt(0)")
    em.lg = []
    em.e("s_mov_b32 s%d, s50" % (60 + k))


def pstamp(em, opts, k):
    if opts.get("stamp") != 1:
        return
    em.e("s_memtime s[%d:%d]" % (80 + 2 * (k - 11), 81 + 2 * (k - 11)))


def pcollect(em, opts):
    if opts.get("stamp") != 1:
        return
    for k in range(11, 16):
        em.e("s_mov_b32 s%d, s%d" % (60 + k, 80 + 2 * (k - 11)))


def stamp_out(em, opts):
    if not opts.get("stamp"):
        return
    stamp(em, opts, 1, real=True)
    e = em.e
    if opts.get("dbg"):
        stamp(em, opts, 15)
        e("s_load_dwordx2 s[52:53], s[0:1], 32")
        e("s_waitcnt lgkmcnt(0)")
        e("s_mov_b32 s54, 256")
        e("s_mov_b32 s55, 0x00020000")
        e("s_mov_b64 exec, 1")
        e("v_mov_b32 v250, 0")
        e("v_mov_b32 v251, s61")
        e("buffer_atomic_umax v251, v250, s[52:55], 0 offen offset:0")
        e("s_not_b32 s50, s60")
        e("v_mov_b32 v251, s50")
        e("buffer_atomic_umax v251, v250, s[52:55], 0 offen offset:4")
        e("s_sub_u32 s50, s75, s62")
        e("v_mov_b32 v251, s50")
        e("buffer_atomic_umax v251, v250, s[52:55], 0 offen offset:8")
        e("s_sub_u32 s50, s61, s60")
        e("v_mov_b32 v251, s50")
        e("buffer_atomic_umax v251, v250, s[52:55], 0 offen offset:12")
        e("s_lshl_b32 s50, s2, 3")
        e("s_add_u32 s50, s50, s%d" % S_WAVE)
        e("s_cmp_lg_u32 s50, 800")
        e("s_cbranch_scc1 L_dbgx%d" % em.nlab)
        for k in range(3, 15):
            e("s_sub_u32 s50, s%d, s62" % (60 + k))
            e("v_mov_b32 v251, s50")
            e("buffer_store_dword v251, v250, s[52:55], 0 offen offset:%d" % (4 * (k + 1)))
        em.label("L_dbgx%d" % em.nlab)
        em.nlab += 1
        return
    e("s_mov_b32 s52, s46")
    e("s_mov_b32 s53, s47")
    e("s_mov_b32 s54, 0x100000")
    e("s_mov_b32 s55, 0x00020000")
    e("s_lshl_b32 s50, s2, 3")
    e("s_add_u32 s50, s50, s%d" % S_WAVE)
    e("s_lshl_b32 s50, s50, 6")
    e("s_mov_b64 exec, 1")
    e("v_mov_b32 v250, 0")
    for k in range(16):
        e("v_mov_b32 v251, s%d" % (60 + k))
        e("buffer_store_dword v251, v250, s[52:55], s50 offen offset:%d" % (4 * k))


def gate_tile(em, j, zreg):
    T = BREG
    for a01 in range(2):
        f = acc(a01, j)
        g = acc(2 + a01, j)
        t1 = [T + 0 + r for r in range(4)]
        t2 = [T + 4 + r for r in range(4)]
        d1 = [T + 8 + r for r in range(4)]
        zz = [T + 12 + r for r in range(4)]
        for r in range(4):
            em.e("v_mul_f32 v%d, s%d, v%d" % (t1[r], S_C1, f + r))
        for r in range(4):
            em.e("v_mul_f32 v%d, s%d, v%d" % (t2[r], S_C2, g + r))
        for r in range(4):
            em.e("v_min_f32 v%d, s%d, v%d" % (t1[r], S_CL, t1[r]))
        for r in range(4):
            em.e("v_exp_f32 v%d, v%d" % (t2[r], t2[r]))
        for r in range(4):
            em.e("v_exp_f32 v%d, v%d" % (t1[r], t1[r]))
        em.e("s_nop 0")
        for r in range(4):
            em.e("v_add_f32 v%d, 1.0, v%d" % (d1[r], t1[r]))
        for r in range(4):
            em.e("v_fma_f32 v%d, v%d, v%d, v%d" % (d1[r], d1[r], t2[r], d1[r]))
        for r in range(4):
            em.e("v_rcp_f32 v%d, v%d" % (d1[r], d1[r]))
        for r in range(4):
            em.e("v_sub_f32 v%d, 1.0, v%d" % (t1[r], t1[r]))
        for r in range(4):
            em.e("v_mul_f32 v%d, v%d, v%d" % (zz[r], t1[r], d1[r]))
        em.e("v_cvt_pk_bf16_f32 v%d, v%d, v%d" % (zreg + 2 * a01, zz[0], zz[1]))
        em.e("v_cvt_pk_bf16_f32 v%d, v%d, v%d" % (zreg + 2 * a01 + 1, zz[2], zz[3]))


def build(opts):
    em = Em()
    e = em.e
    GR = [int(v) for v in str(opts.get("gr", "0,8,16,24")).split(",")]
    GD = [int(v) for v in str(opts.get("gd", "6,14,22,30")).split(",")]
    XL = int(opts.get("xl", 2))
    XR = [int(v) for v in str(opts.get("xr", "0,1,2,3,4")).split(",")]
    XG = [int(v) for v in str(opts.get("xg", "2,2,2,2,2")).split(",")]
    RS = int(opts.get("rs", 7))
    assert RS >= max(XR) + 3 or (RS == max(XR) + 2)
    e("s_cmp_ge_u32 s2, 250")
    e("s_cbranch_scc1 L_end")
    e("s_load_dwordx4 s[4:7], s[0:1], 0")
    e("s_load_dwordx4 s[8:11], s[0:1], 16")
    if opts.get("stamp"):
        e("s_load_dwordx2 s[46:47], s[0:1], 40")
        for k in range(16):
            e("s_mov_b32 s%d, 0" % (60 + k))
        e("s_memrealtime s[58:59]")
        e("s_memtime s[50:51]")
    e("v_and_b32 v0, 0x3ff, v0")
    e("v_lshrrev_b32 v1, 6, v0")
    e("v_and_b32 v%d, 63, v0" % V_LANE)
    e("v_readfirstlane_b32 s%d, v1" % S_WAVE)
    L = V_LANE
    e("v_lshrrev_b32 v5, 3, v%d" % L)
    e("v_lshlrev_b32 v5, 9, v5")
    e("v_and_b32 v6, 7, v%d" % L)
    e("v_lshl_add_u32 v%d, v6, 4, v5" % V_XD)
    e("s_lshl_b32 s%d, s2, 16" % S_G0)
    e("s_cmp_eq_u32 s2, 0")
    e("s_cselect_b32 s%d, 1, 0" % S_T3)
    e("s_cmp_eq_u32 s2, 125")
    e("s_cselect_b32 s%d, 1, s%d" % (S_T3, S_T3))
    e("s_and_b32 s%d, s%d, 3" % (S_T2, S_WAVE))
    e("s_cmp_eq_u32 s%d, 0" % S_T2)
    e("s_cselect_b32 s%d, s%d, 0" % (S_T3, S_T3))
    e("s_mul_i32 s%d, s%d, %d" % (S_XM, S_T2, PIECE))
    e("s_lshl_b32 s%d, s%d, 12" % (S_XS, S_T2))
    e("s_add_u32 s%d, s%d, s%d" % (S_XS, S_XS, S_G0))
    e("s_sub_u32 s%d, s%d, 4096" % (S_XS, S_XS))
    e("s_lshr_b32 s%d, s%d, 2" % (S_ISL, S_WAVE))
    e("v_lshrrev_b32 v1, 4, v%d" % L)
    e("v_bfe_u32 v2, v%d, 2, 2" % L)
    e("v_and_b32 v3, 3, v%d" % L)
    e("v_and_b32 v4, 1, v1")
    e("v_lshlrev_b32 v5, 13, v1")
    e("v_lshl_add_u32 v5, v2, 10, v5")
    e("v_lshlrev_b32 v6, 1, v4")
    e("v_xor_b32 v6, v6, v3")
    e("v_lshl_add_u32 v5, v6, 4, v5")
    e("s_lshl_b32 s%d, s%d, 6" % (S_T0, S_WAVE))
    e("v_add_u32 v%d, s%d, v5" % (V_WD0, S_T0))
    e("v_add_u32 v%d, 0x1000, v%d" % (V_WD1, V_WD0))
    e("s_lshl_b32 s%d, s%d, 13" % (S_RING, S_WAVE))
    e("s_add_u32 s%d, s%d, %d" % (S_RING, S_RING, RING0))
    for (sr, p, nbytes) in ((S_X, 4, 16384000), (S_X0, 4, 16384000), (S_W, 6, 1310720), (S_WO, 8, 131072), (S_OUT, 10, 16384000)):
        e("s_mov_b32 s%d, %d" % (sr + 2, nbytes))
        e("s_mov_b32 s%d, 0x00020000" % (sr + 3))
    e("s_cmp_eq_u32 s%d, 1" % S_T3)
    e("s_cselect_b32 s%d, 0, s%d" % (S_X0 + 2, S_X0 + 2))
    e("s_waitcnt lgkmcnt(0)")
    if opts.get("stamp"):
        e("s_mov_b32 s60, s58")
        e("s_mov_b32 s62, s50")
    pstamp(em, opts, 11)
    for (sr, p) in ((S_X, 4), (S_X0, 4), (S_W, 6), (S_WO, 8), (S_OUT, 10)):
        e("s_mov_b64 s[%d:%d], s[%d:%d]" % (sr, sr + 1, p, p + 1))

    def xpiece(i):
        return [("op", "s_add_u32 m0, s%d, %d" % (S_XM, 4 * i * PIECE)),
                ("op", "s_add_u32 s%d, s%d, %d" % (S_T2, S_XS, 4 * i * 4096)),
                ("op", "buffer_load_dwordx4 v%d, %s, s%d offen lds" % (V_XD, srd(S_X0 if i == 0 else S_X), S_T2))]

    def soff_const(step):
        it, rel = divmod(step, 10)
        kh, tap = divmod(rel, 5)
        return it, tap * 262144 + kh * 32768

    def dma_items(step, u):
        fg, h = u >> 1, u & 1
        slot = (4 * step + u) % NRING
        m0 = ("op", "s_add_u32 m0, s%d, %d" % (S_RING, slot * 1024 - fg * 512)) if slot * 1024 - fg * 512 >= 0 else \
             ("op", "s_sub_u32 m0, s%d, %d" % (S_RING, fg * 512 - slot * 1024))
        d = ("vm", "buffer_load_dwordx4 v%d, %s, s%d offen offset:%d lds" % (
            V_WD1 if h else V_WD0, srd(S_W), S_SOFF, fg * 512), ("u", step, u))
        return m0, d

    def tr_items(step, u):
        fg, h = u >> 1, u & 1
        slot = (4 * step + u) % NRING
        ab = AREG + 16 * (step % 2)
        out = [("wvm", ("u", step, u))]
        for a01 in range(2):
            d = ab + 4 * (2 * fg + a01) + 2 * h
            out.append(("lg", "ds_read_b64_tr_b16 %s, v%d offset:%d" % (vr(d, 2), V_A1 if a01 else V_A0, slot * 1024),
                        ("a", step, u, a01)))
        return out

    def ring_fill(st, track=True):
        e("s_mov_b32 s%d, %d" % (S_SOFF, soff_const(st)[1]))
        for u in range(4):
            m0, d = dma_items(st, u)
            em.item(m0)
            e("s_nop 0")
            if track:
                em.item(d)
            else:
                e(d[1])

    LPRE = int(opts.get("lpre", 1))
    XPW = int(opts.get("xpw", 0))
    e("s_lshr_b32 s%d, s2, 3" % S_I)
    e("s_cmp_eq_u32 s%d, 0" % S_ISL)
    e("s_cbranch_scc1 L_hpro")
    for i in range(4):
        for it in xpiece(i):
            em.item(it)
    e("s_cmp_lg_u32 s%d, 4" % S_WAVE)
    e("s_cbranch_scc1 L_ppro")
    for it in xpiece(4):
        em.item(it)
    e("s_branch L_ppro")
    em.label("L_hpro")
    ring_fill(0)
    ring_fill(1)
    em.label("L_ppro")
    pstamp(em, opts, 12)
    e("s_and_b32 s%d, s%d, 3" % (S_T2, S_WAVE))
    SPF = str(opts.get("spf", ""))
    if SPF:
        e("s_and_b32 s%d, s%d, 1" % (S_T0, S_T2))
        e("s_lshl_b32 s%d, s%d, 7" % (S_T0, S_T0))
        e("s_lshr_b32 s%d, s%d, 1" % (S_T1, S_T2))
        e("s_lshl_b32 s%d, s%d, 9" % (S_T1, S_T1))
        e("s_add_u32 s%d, s%d, s%d" % (S_T0, S_T0, S_T1))
        e("s_lshl_b32 s%d, s%d, 8" % (S_T1, S_ISL))
        e("s_add_u32 s%d, s%d, s%d" % (S_T0, S_T0, S_T1))
        e("s_lshl_b32 s%d, s%d, 10" % (S_P0, S_I))
        e("s_add_u32 s%d, s%d, s%d" % (S_P0, S_P0, S_T0))
        e("s_add_u32 s%d, s%d, %d" % (S_P1, S_P0, 229376))
        e("s_add_u32 s%d, s%d, %d" % (S_P2, S_P0, 1048576))
        q0, q1 = [int(v) for v in SPF.split("-")]
        for q in range(q0, q1):
            cs, tap = divmod(q, 5)
            c1 = tap * 262144 + cs * 32768 - q * 1024
            e("s_cmp_ge_u32 s%d, %d" % (S_I, q))
            if tap:
                imm = c1 - 229376
                e("s_cselect_b32 s%d, s%d, s%d" % (S_T0, S_P1, S_P0))
            else:
                imm = c1
                e("s_cselect_b32 s%d, s%d, s%d" % (S_T0, S_P0, S_P2))
            assert imm >= 0
            e("s_buffer_load_dword s%d, %s, s%d offset:%d" % (S_PD, srd(S_W), S_T0, imm))
    pstamp(em, opts, 13)
    e("s_add_u32 s%d, s%d, 1" % (S_T0, S_ISL))
    e("s_mul_i32 s%d, s%d, %d" % (S_T1, S_T0, CHUNK))
    e("s_add_u32 s%d, s%d, s%d" % (S_XM, S_XM, S_T1))
    e("s_lshl_b32 s%d, s%d, 7" % (S_T1, S_T0))
    e("s_add_u32 s%d, s%d, s%d" % (S_XS, S_XS, S_T1))
    e("s_lshl_b32 s%d, s%d, 2" % (S_T1, S_T0))
    e("s_add_u32 s%d, s%d, %d" % (S_T1, S_T1, FLG + F_X))
    e("v_mov_b32 v%d, s%d" % (V_SG, S_T1))
    e("s_mov_b32 s%d, 1" % S_HOOK)
    e("s_cmp_eq_u32 s%d, 0" % S_T2)
    e("s_cselect_b32 s%d, 1, 0" % S_HOOK2)
    XPF = int(opts.get("xpf", 0))
    if XPF:
        e("s_mul_i32 s%d, s%d, %d" % (S_T0, S_T2, 34 * 512))
        e("s_add_u32 s%d, s%d, s%d" % (S_T0, S_T0, S_G0))
        e("s_sub_u32 s%d, s%d, %d" % (S_T0, S_T0, 4096 - 128))
        for k, dst in ((0, V_PFA), (1, V_PFB)):
            e("v_add_u32 v5, %d, v%d" % (64 * k, L))
            e("v_mul_u32_u24 v6, 0x788, v5")
            e("v_lshrrev_b32 v6, 16, v6")
            e("v_mul_u32_u24 v7, 34, v6")
            e("v_sub_u32 v7, v5, v7")
            e("v_lshlrev_b32 v7, 9, v7")
            e("v_lshl_add_u32 v7, v6, 7, v7")
            e("v_add_u32 v7, s%d, v7" % S_T0)
            e("v_max_i32 v7, 0, v7")
            e("v_cmp_gt_u32 vcc, 102, v5")
            e("v_mov_b32 v6, 0x7fffff00")
            e("v_cndmask_b32 v%d, v6, v7, vcc" % dst)

    def xprefetch():
        n = 0
        for v in (V_PFA, V_PFB):
            for hh in range(XPF):
                e("buffer_load_dword v%d, v%d, %s, 0 offen offset:%d" % (V_DUMMY, v, srd(S_X), 64 * hh))
                n += 1
        return n
    e("s_lshl_b32 s%d, s%d, 13" % (S_T0, S_I))
    e("v_lshlrev_b32 v5, 7, v%d" % L)
    e("v_add_u32 v%d, s%d, v5" % (V_PFC, S_T0))
    e("s_mov_b32 s%d, 0x%08x" % (S_C1, f32bits(-2.0 * 1.4426950408889634)))
    e("s_mov_b32 s%d, 0x%08x" % (S_C2, f32bits(-1.4426950408889634)))
    e("s_mov_b32 s%d, 0x%08x" % (S_CL, f32bits(30.0)))
    e("v_lshlrev_b32 v5, 8, v1")
    e("v_lshl_add_u32 v5, v2, 6, v5")
    e("v_lshl_add_u32 v6, v4, 5, v5")
    e("v_lshl_add_u32 v6, v3, 3, v6")
    e("v_add_u32 v%d, s%d, v6" % (V_A0, S_RING))
    e("v_xor_b32 v6, 32, v6")
    e("v_add_u32 v%d, s%d, v6" % (V_A1, S_RING))
    e("s_and_b32 s%d, s%d, 3" % (S_T2, S_WAVE))
    e("s_mul_i32 s%d, s%d, %d" % (S_WOR, S_T2, NWO * 1024))
    e("s_add_u32 s%d, s%d, %d" % (S_WOR, S_WOR, WOB))
    e("v_lshl_add_u32 v6, v3, 4, v5")
    e("v_add_u32 v%d, s%d, v6" % (V_OA, S_WOR))
    e("v_lshrrev_b32 v6, 2, v%d" % L)
    e("v_lshlrev_b32 v6, 9, v6")
    e("v_lshl_add_u32 v6, v3, 4, v6")
    e("s_lshl_b32 s%d, s%d, 7" % (S_T2, S_T2))
    e("v_add_u32 v%d, s%d, v6" % (V_WOD, S_T2))
    e("v_and_b32 v7, 15, v%d" % L)
    e("s_mov_b32 s%d, %d" % (S_T1, PIECE))
    e("v_mul_lo_u32 v5, v7, s%d" % S_T1)
    e("v_lshl_add_u32 v%d, v1, 4, v5" % V_X)
    e("v_lshlrev_b32 v5, 12, v7")
    e("v_lshl_add_u32 v5, v1, 4, v5")
    e("v_add_u32 v%d, s%d, v5" % (V_OUT, S_T2))
    e("v_lshlrev_b32 v5, 4, v%d" % L)
    e("v_add_u32 v%d, %d, v5" % (V_Z, RING0))
    e("v_add_u32 v%d, s%d, v5" % (V_ZW, S_RING))
    e("v_mov_b32 v%d, %d" % (V_FA, FLG))
    e("v_mov_b32 v%d, %d" % (V_FL, FLG + F_X + 4))
    e("v_mov_b32 v%d, 1" % V_ONE)
    e("s_cmp_lg_u32 s%d, 4" % S_WAVE)
    e("s_cbranch_scc1 L_nofl")
    e("v_lshlrev_b32 v5, 2, v%d" % L)
    e("v_add_u32 v5, %d, v5" % FLG)
    e("v_cmp_eq_u32 vcc, 4, v%d" % L)
    e("v_mov_b32 v6, 0")
    e("s_nop 0")
    e("v_cndmask_b32 v6, v6, v%d, vcc" % L)
    e("ds_write_b32 v5, v6")
    em.label("L_nofl")
    for r in range(128):
        e("v_mov_b32 v%d, 0" % (ACC + r))
    e("s_mov_b32 s%d, 0" % S_IT)
    e("s_mov_b32 s%d, 0" % S_CNT)
    pstamp(em, opts, 14)

    def soff_item(step, cur):
        it, c = soff_const(step)
        return ("op", "s_add_u32 s%d, s%d, %d" % (S_SOFF, S_IT, c + (it - cur) * 65536))

    def cold_a():
        em.item(soff_item(2, 0))
        for u in range(4):
            for it in tr_items(0, u):
                em.item(it)
        for u in range(4):
            m0, d = dma_items(2, u)
            em.item(m0)
            em.wait_lg(("a", 0, u, 1))
            e("s_nop 0")
            em.item(d)

    e("s_setprio 3")
    e("s_cmp_eq_u32 s%d, 0" % S_ISL)
    e("s_cbranch_scc1 L_hw")
    for st in range(LPRE):
        ring_fill(st, False)
    npf = xprefetch() if XPW == 0 else 0
    e("s_waitcnt vmcnt(%d) lgkmcnt(0)" % (4 * LPRE + npf))
    e("s_barrier")
    for st in range(LPRE, 2):
        ring_fill(st, False)
    if XPW == 1:
        xprefetch()
    sv = (list(em.vm), list(em.lg))
    cold_a()
    em.vm, em.lg = sv
    if XPW == 2:
        xprefetch()
    e("s_branch L_bar")
    em.label("L_hw")
    cold_a()
    pstamp(em, opts, 15)
    e("s_barrier")
    em.label("L_bar")
    stamp(em, opts, 3)
    pcollect(em, opts)

    slotkey = [None] * 8

    def bkey(step, j):
        cs, tap = divmod(step, 5)
        sidx = j - 2 * tap + 8
        return sidx & 7, (cs, sidx)

    def bread(step, j):
        slot, key = bkey(step, j)
        if slotkey[slot] == key:
            return None
        slotkey[slot] = key
        cs, tap = divmod(step, 5)
        sidx = j - 2 * tap + 8
        off = (sidx >> 3) * PIECE + (sidx & 7) * 128 + (cs & 1) * 64
        return ("lg", "ds_read_b128 %s, v%d offset:%d" % (vr(BREG + 4 * slot, 4), V_X, off), ("b", key))

    for j in range(7, -1, -1):
        em.item(bread(0, j))
    if int(opts.get("order", 0)) in (0, 2):
        e("s_waitcnt lgkmcnt(6)")
        em.lg = em.lg[-6:]
    else:
        e("s_waitcnt lgkmcnt(0)")
        em.lg = []
    stamp(em, opts, 4)

    def hook(items, lab):
        return [("op", "s_cmp_eq_u32 s%d, 0" % S_HOOK), ("op", "s_cbranch_scc1 %s" % lab)] + items + [("lab", lab)]

    def signal(c):
        return [("op", "ds_add_u32 v%d, v%d offset:%d" % (V_FA, V_ONE, F_X + 4 * c))]

    def gstep(step):
        rel = step % 10
        cur = step // 10
        ab = AREG + 16 * (step % 2)
        gaps = [[] for _ in range(33)]
        gaps[0].append(soff_item(step + 3, cur))
        if rel == 7:
            gaps[0].append(("op", "s_cmp_eq_u32 s%d, 3" % S_CNT))
            gaps[0].append(("op", "s_cselect_b32 s%d, 0, s%d" % (S_W + 2, S_W + 2)))
        for u in range(4):
            for it in tr_items(step + 1, u):
                gaps[GR[u]].append(it)
            m0, d = dma_items(step + 3, u)
            gaps[GD[u] - 1].append(m0)
            gaps[GD[u]].append(("wlg", ("a", step + 1, u, 1)))
            gaps[GD[u]].append(d)
        sig = [("op", "s_mov_b64 exec, 1"),
               ("op", "ds_add_u32 v%d, v%d" % (V_SG, V_ONE)),
               ("op", "s_mov_b64 exec, -1")]
        for i in range(5):
            if XR[i] == rel and not opts.get("nox"):
                lab = "L_hx%d" % i
                gaps[XG[i]] += [("op", "s_cmp_eq_u32 s%d, 0" % (S_HOOK2 if i == 4 else S_HOOK)), ("op", "s_cbranch_scc1 %s" % lab)] + xpiece(i) + [("lab", lab)]
        if rel == RS:
            gaps[2] += hook(sig, "L_hsig")
        if rel == 8:
            gaps[10].append(("lg", "ds_read_b32 v%d, v%d" % (V_F, V_FL), ("fl", step)))
        pre = []
        if rel == 9:
            pre = [("wlg", ("fl", step - 1)),
                   ("op", "v_readfirstlane_b32 s%d, v%d" % (S_T0, V_F)),
                   ("op", "v_add_u32 v%d, %d, v%d" % (V_X, CHUNK, V_X)),
                   ("op", "s_cmp_eq_u32 s%d, 4" % S_T0),
                   ("op", "s_cbranch_scc1 L_pok"),
                   ("lab", "L_pspin"),
                   ("op", "ds_read_b32 v%d, v%d" % (V_F, V_FL)),
                   ("op", "s_waitcnt lgkmcnt(0)"),
                   ("op", "v_readfirstlane_b32 s%d, v%d" % (S_T0, V_F)),
                   ("op", "s_cmp_eq_u32 s%d, 4" % S_T0),
                   ("op", "s_cbranch_scc0 L_pspin"),
                   ("lab", "L_pok"),
                   ("op", "v_add_u32 v%d, 4, v%d" % (V_FL, V_FL))]
        for it in pre:
            em.item(it)
        nxt = step + 1
        pending = {}
        for j2 in range(8):
            slot, key = bkey(nxt, j2)
            pending[slot] = j2
        k = 0
        ORD = int(opts.get("order", 0))
        if ORD == 0:
            seq = [(j, a) for j in range(7, -1, -1) for a in range(4)]
        elif ORD == 1:
            seq = [(j, a) for a in range(4) for j in range(7, -1, -1)]
        elif ORD == 2:
            seq = [(j, (a if (j & 1) else 3 - a)) for j in range(7, -1, -1) for a in range(4)]
        elif ORD == 3:
            seq = [(j, 2 * ah + a) for ah in range(2) for j in range(7, -1, -1) for a in range(2)]
        last = {}
        for idx, (j, a) in enumerate(seq):
            last[j] = idx
        for idx, (j, a) in enumerate(seq):
            slot, key = bkey(step, j)
            em.wait_lg(("b", key))
            em.wait_lg(("a", step, 2 * (a >> 1) + 1, a & 1))
            em.e("v_mfma_f32_16x16x32_bf16 %s, %s, %s, %s" % (
                vr(acc(a, j), 4), vr(ab + 4 * a, 4), vr(BREG + 4 * slot, 4), vr(acc(a, j), 4)))
            if last[j] == idx and slot in pending:
                it = bread(nxt, pending[slot])
                if it:
                    em.item(it)
            for it in gaps[k]:
                em.item(it)
            k += 1

    start = len(em.lines)
    for s in range(0, 10):
        gstep(s)
    mid = len(em.lines)
    for s in range(10, 20):
        gstep(s)
    end = len(em.lines)
    b1 = em.lines[start:mid]
    b2 = em.lines[mid:end]
    if b1 != b2:
        import difflib
        for l in difflib.unified_diff(b1, b2, lineterm="", n=0):
            print("DIFF", l)
    b1 = b2
    em.lines = em.lines[:start]
    if opts.get("nodma"):
        b1 = [l for l in b1 if not ("s[16:19]" in l) and "vmcnt" not in l]
    if opts.get("nomfma"):
        b1 = [l for l in b1 if "v_mfma" not in l]
    em.label("L_loop")
    em.lines += b1
    if opts.get("stamp") == 2:
        e("s_memtime s[80:81]")
        e("s_mov_b32 s71, s72")
        e("s_mov_b32 s72, s73")
        e("s_mov_b32 s73, s74")
        e("s_waitcnt lgkmcnt(0)")
        e("s_mov_b32 s74, s80")
    e("s_add_u32 s%d, s%d, 65536" % (S_IT, S_IT))
    e("s_add_u32 s%d, s%d, 1" % (S_CNT, S_CNT))
    e("s_add_u32 s%d, s%d, %d" % (S_XM, S_XM, CHUNK))
    e("s_add_u32 s%d, s%d, 128" % (S_XS, S_XS))
    e("v_add_u32 v%d, 4, v%d" % (V_SG, V_SG))
    e("s_cmp_gt_u32 s%d, s%d" % (S_CNT, S_ISL))
    e("s_cselect_b32 s%d, 0, s%d" % (S_HOOK, S_HOOK))
    e("s_cselect_b32 s%d, 0, s%d" % (S_HOOK2, S_HOOK2))
    e("s_mul_i32 s%d, s%d, %d" % (S_T0, S_ISL, XL - 1))
    e("s_add_u32 s%d, s%d, 1" % (S_T0, S_T0))
    e("s_cmp_lg_u32 s%d, s%d" % (S_T0, S_CNT))
    e("s_cbranch_scc1 L_nsp")
    e("s_setprio 2")
    e("s_cmp_eq_u32 s%d, 0" % S_ISL)
    e("s_cbranch_scc1 L_nsp")
    e("s_setprio 1")
    em.label("L_nsp")
    e("s_cmp_lt_u32 s%d, 4" % S_CNT)
    e("s_cbranch_scc1 L_loop")
    e("s_waitcnt lgkmcnt(0)")
    em.lg = []
    stamp(em, opts, 5)
    e("s_cmp_lg_u32 s%d, 0" % S_ISL)
    e("s_cbranch_scc1 L_low")
    vm_after_loop = list(em.vm)

    e("s_setprio 0")

    def wo_dma(U):
        ks, u = divmod(U, 4)
        ch, h = u >> 1, u & 1
        slot = U % NWO
        off = slot * 1024 - ch * 64
        m0 = ("op", "s_add_u32 m0, s%d, %d" % (S_WOR, off)) if off >= 0 else ("op", "s_sub_u32 m0, s%d, %d" % (S_WOR, -off))
        so = ("op", "s_mov_b32 s%d, %d" % (S_SOFF, (32 * ks + 16 * h) * 512))
        d = ("vm", "buffer_load_dwordx4 v%d, %s, s%d offen offset:%d lds" % (V_WOD, srd(S_WO), S_SOFF, ch * 64), ("o", U))
        return [m0, so, d]

    def wo_tr(U):
        ks, u = divmod(U, 4)
        ch, h = u >> 1, u & 1
        slot = U % NWO
        ab = AREG + 16 * (ks % 4)
        out = [("wvm", ("o", U))]
        for a1 in range(2):
            d = ab + 4 * (2 * ch + a1) + 2 * h
            out.append(("lg", "ds_read_b64_tr_b16 %s, v%d offset:%d" % (vr(d, 2), V_OA, slot * 1024 + a1 * 8), ("oa", U, a1)))
        return out

    for U in range(NWO):
        for it in wo_dma(U):
            em.item(it)
    nextdma = NWO
    for t, j in enumerate(range(7, -1, -1)):
        zreg = BREG + 16 + 4 * (t % 4)
        gate_tile(em, j, zreg)
        if t == 0:
            em.wait_vm(vm_after_loop[-1])
        em.lgop("ds_write_b128 v%d, %s offset:%d" % (V_ZW, vr(zreg, 4), j * 1024), ("zw", j))
        if t >= 1:
            em.wait_lg(("oa", 2 * t - 1, 1))
            for U in (nextdma, nextdma + 1):
                for it in wo_dma(U):
                    em.item(it)
            nextdma += 2
        for U in (2 * t, 2 * t + 1):
            for it in wo_tr(U):
                em.item(it)
    e("s_mov_b64 exec, 1")
    em.lgop("ds_add_u32 v%d, v%d offset:%d" % (V_FA, V_ONE, F_ZH), ("zf",))
    e("s_mov_b64 exec, -1")
    em.wait_lg(("oa", 15, 1))
    for U in (nextdma, nextdma + 1):
        for it in wo_dma(U):
            em.item(it)
    nextdma += 2
    stamp(em, opts, 6)
    em.label("L_zhs")
    e("ds_read_b32 v%d, v%d offset:%d" % (V_F, V_FA, F_ZH))
    e("s_waitcnt lgkmcnt(0)")
    em.lg = []
    e("v_readfirstlane_b32 s%d, v%d" % (S_T0, V_F))
    e("s_cmp_eq_u32 s%d, 4" % S_T0)
    e("s_cbranch_scc0 L_zhs")
    if opts.get("hp2"):
        e("s_setprio 2")
    stamp(em, opts, 7)

    def zread(ks, j, slot):
        return ("lg", "ds_read_b128 %s, v%d offset:%d" % (vr(BREG + 4 * slot, 4), V_Z, ks * 8192 + j * 1024), ("z", ks, j))

    for j in range(7, -1, -1):
        em.item(zread(0, j, j))
    for ks in range(4):
        ab = AREG + 16 * ks
        gaps = [[] for _ in range(33)]
        if ks >= 1:
            for u in range(4):
                U = 4 * (ks + 3) + u
                for it in wo_tr(U):
                    gaps[8 * u].append(it)
                if nextdma < 32:
                    gaps[8 * u + 6].append(("wlg", ("oa", U, 1)))
                    for it in wo_dma(nextdma):
                        gaps[8 * u + 6].append(it)
                    nextdma += 1
        k = 0
        for j in range(7, -1, -1):
            em.wait_lg(("z", ks, j))
            for a in range(4):
                c = "0" if ks == 0 else vr(acc(a, j), 4)
                e("v_mfma_f32_16x16x32_bf16 %s, %s, %s, %s" % (vr(acc(a, j), 4), vr(ab + 4 * a, 4), vr(BREG + 4 * j, 4), c))
                if a == 3 and ks < 3:
                    em.item(zread(ks + 1, j, j))
                for it in gaps[k]:
                    em.item(it)
                k += 1
    assert nextdma == 32, nextdma
    for u in range(4):
        for it in wo_tr(28 + u):
            em.item(it)
    stamp(em, opts, 8)

    def epi(j, t):
        for ch in range(2):
            tt = V_DUMMY + 4 * ((2 * t + ch) % 4) if False else BREG + 0
            tt = 240 + 4 * ((2 * t + ch) % 4)
            for a1 in range(2):
                aa = acc(2 * ch + a1, j)
                e("v_cvt_pk_bf16_f32 v%d, v%d, v%d" % (tt + 2 * a1, aa, aa + 1))
                e("v_cvt_pk_bf16_f32 v%d, v%d, v%d" % (tt + 2 * a1 + 1, aa + 2, aa + 3))
            e("buffer_store_dwordx4 %s, v%d, %s, s%d offen offset:%d %s" % (
                vr(tt, 4), V_OUT, srd(S_OUT), S_G0, j * 512 + ch * 64, str(opts.get("sf", "")).replace("+", " ")))

    prev = None
    for t, j in enumerate(range(7, -1, -1)):
        sb = 4 * (t % 2)
        em.label("L_zl%d" % j)
        e("ds_read_b32 v%d, v%d offset:%d" % (V_F, V_FA, F_ZL + 4 * j))
        for k4 in range(4):
            e(zread(4 + k4, j, sb + k4)[1])
        if prev is not None:
            pass
        e("s_waitcnt lgkmcnt(0)")
        em.lg = []
        e("v_readfirstlane_b32 s%d, v%d" % (S_T0, V_F))
        e("s_cmp_eq_u32 s%d, 4" % S_T0)
        e("s_cbranch_scc0 L_zl%d" % j)
        for k4 in range(4):
            ab = AREG + 16 * k4
            for a in range(4):
                e("v_mfma_f32_16x16x32_bf16 %s, %s, %s, %s" % (vr(acc(a, j), 4), vr(ab + 4 * a, 4), vr(BREG + 4 * (sb + k4), 4), vr(acc(a, j), 4)))
        e("s_nop 7")
        epi(j, t)
    stamp(em, opts, 9)
    if opts.get("stamp"):
        e("s_waitcnt vmcnt(0)")
    stamp(em, opts, 10)
    stamp_out(em, opts)
    e("s_endpgm")

    em.label("L_low")
    em.vm = []
    em.lg = []
    e("s_setprio 3")
    for t, j in enumerate(range(7, -1, -1)):
        zreg = BREG + 16 + 4 * (t % 4)
        gate_tile(em, j, zreg)
        if t == 0:
            e("s_waitcnt vmcnt(0)")
        e("ds_write_b128 v%d, %s offset:%d" % (V_ZW, vr(zreg, 4), j * 1024))
        e("s_mov_b64 exec, 1")
        e("ds_add_u32 v%d, v%d offset:%d" % (V_FA, V_ONE, F_ZL + 4 * j))
        e("s_mov_b64 exec, -1")
    e("s_waitcnt lgkmcnt(0)")
    stamp(em, opts, 6)
    stamp_out(em, opts)
    em.label("L_end")
    e("s_endpgm")

    txt = HEADER % (LDS_TOTAL, NAME, NAME, NAME) + "\n".join(em.lines) + FOOTER % NAME
    return txt


if __name__ == "__main__":
    out = sys.argv[1] if len(sys.argv) > 1 else "cdna_kernels/%s.s" % NAME
    opts = {}
    for a in sys.argv[2:]:
        k, v = a.split("=")
        opts[k] = int(v) if v.isdigit() else v
    open(out, "w").write(build(opts))
    print("wrote", out)
```

```python
import sys
import struct

NAME = "standalone__autoregressive_conv_wavenet__speech"

HEADER = """; Kernarg layout for this problem (48 bytes, ptrs only, base s[0:1]):
; @launch grid=(250,1,1) block=(512,1,1) lds=%d
.amdgcn_target "amdgcn-amd-amdhsa--gfx950"
.text
.globl %s_kernel
.p2align 8
.type %s_kernel,@function
%s_kernel:
"""

FOOTER = """
.section .rodata,"a"
.p2align 6
.amdhsa_kernel %s_kernel
  .amdhsa_next_free_vgpr 256
  .amdhsa_next_free_sgpr 102
  .amdhsa_accum_offset 256
  .amdhsa_group_segment_fixed_size 0
  .amdhsa_kernarg_size 48
  .amdhsa_user_sgpr_count 2
  .amdhsa_user_sgpr_kernarg_segment_ptr 1
  .amdhsa_system_sgpr_workgroup_id_x 1
.end_amdhsa_kernel
"""

PIECE = 1056
CHUNK = 17 * PIECE
XBYTES = 4 * CHUNK
RING0 = XBYTES
NRING = 8
WOB = RING0 + 65536
NWO = 6
FLG = WOB + 4 * NWO * 1024
LDS_TOTAL = FLG + 256
F_X = 0
F_ZH = 32
F_ZL = 64


def f32bits(x):
    return struct.unpack("<I", struct.pack("<f", x))[0]


ACC = 0
BREG = 128
AREG = 160
(V_WD0, V_WD1, V_A0, V_A1, V_X, V_Z, V_ZW, V_WOD, V_OA, V_OUT, V_XD, V_FL, V_F, V_ONE, V_PF, V_FA) = range(224, 240)
V_DUMMY = 240
V_LANE = 244
V_PFA, V_PFB, V_PFC, V_SG = 245, 246, 247, 248

S_X, S_W, S_WO, S_OUT, S_X0 = 12, 16, 20, 24, 28
S_WAVE = 32
S_IT = 33
S_CNT = 34
S_SOFF = 35
S_T0, S_T1, S_T2, S_T3 = 36, 37, 38, 39
S_G0 = 40
S_RING = 41
S_C1, S_C2, S_CL = 42, 43, 44
S_HOOK = 45
S_XM = 48
S_XS = 49
S_WOR = 56
S_ISL = 57
S_HOOK2 = 90
S_I, S_P0, S_P1, S_P2, S_PD = 93, 94, 95, 96, 97


def acc(a, j):
    return ACC + (j * 4 + a) * 4


def vr(b, n):
    return "v[%d:%d]" % (b, b + n - 1)


def srd(b):
    return "s[%d:%d]" % (b, b + 3)


class Em:
    def __init__(self):
        self.lines = []
        self.vm = []
        self.lg = []
        self.nlab = 0

    def e(self, s):
        self.lines.append("    " + s)

    def label(self, s):
        self.lines.append(s + ":")

    def vmop(self, s, tag):
        self.e(s)
        self.vm.append(tag)

    def lgop(self, s, tag):
        self.e(s)
        self.lg.append(tag)

    def wait_vm(self, tag):
        if tag in self.vm:
            idx = len(self.vm) - 1 - self.vm[::-1].index(tag)
            n = len(self.vm) - 1 - idx
            self.e("s_waitcnt vmcnt(%d)" % min(n, 63))
            self.vm = self.vm[idx + 1:]

    def wait_lg(self, tag):
        if tag in self.lg:
            idx = len(self.lg) - 1 - self.lg[::-1].index(tag)
            n = len(self.lg) - 1 - idx
            self.e("s_waitcnt lgkmcnt(%d)" % min(n, 15))
            self.lg = self.lg[idx + 1:]

    def wait_all(self):
        self.e("s_waitcnt vmcnt(0) lgkmcnt(0)")
        self.vm = []
        self.lg = []

    def item(self, it):
        if it[0] == "op":
            self.e(it[1])
        elif it[0] == "lab":
            self.label(it[1])
        elif it[0] == "vm":
            self.vmop(it[1], it[2])
        elif it[0] == "lg":
            self.lgop(it[1], it[2])
        elif it[0] == "wvm":
            self.wait_vm(it[1])
        elif it[0] == "wlg":
            self.wait_lg(it[1])


def stamp(em, opts, k, real=False):
    if not opts.get("stamp"):
        return
    em.e("%s s[50:51]" % ("s_memrealtime" if real else "s_memtime"))
    em.e("s_waitcnt lgkmcnt(0)")
    em.lg = []
    em.e("s_mov_b32 s%d, s50" % (60 + k))


def pstamp(em, opts, k):
    if opts.get("stamp") != 1:
        return
    em.e("s_memtime s[%d:%d]" % (80 + 2 * (k - 11), 81 + 2 * (k - 11)))


def pcollect(em, opts):
    if opts.get("stamp") != 1:
        return
    for k in range(11, 16):
        em.e("s_mov_b32 s%d, s%d" % (60 + k, 80 + 2 * (k - 11)))


def stamp_out(em, opts):
    if not opts.get("stamp"):
        return
    stamp(em, opts, 1, real=True)
    e = em.e
    if opts.get("dbg"):
        stamp(em, opts, 15)
        e("s_load_dwordx2 s[52:53], s[0:1], 32")
        e("s_waitcnt lgkmcnt(0)")
        e("s_mov_b32 s54, 256")
        e("s_mov_b32 s55, 0x00020000")
        e("s_mov_b64 exec, 1")
        e("v_mov_b32 v250, 0")
        e("v_mov_b32 v251, s61")
        e("buffer_atomic_umax v251, v250, s[52:55], 0 offen offset:0")
        e("s_not_b32 s50, s60")
        e("v_mov_b32 v251, s50")
        e("buffer_atomic_umax v251, v250, s[52:55], 0 offen offset:4")
        e("s_sub_u32 s50, s75, s62")
        e("v_mov_b32 v251, s50")
        e("buffer_atomic_umax v251, v250, s[52:55], 0 offen offset:8")
        e("s_sub_u32 s50, s61, s60")
        e("v_mov_b32 v251, s50")
        e("buffer_atomic_umax v251, v250, s[52:55], 0 offen offset:12")
        e("s_lshl_b32 s50, s2, 3")
        e("s_add_u32 s50, s50, s%d" % S_WAVE)
        e("s_cmp_lg_u32 s50, 800")
        e("s_cbranch_scc1 L_dbgx%d" % em.nlab)
        for k in range(3, 15):
            e("s_sub_u32 s50, s%d, s62" % (60 + k))
            e("v_mov_b32 v251, s50")
            e("buffer_store_dword v251, v250, s[52:55], 0 offen offset:%d" % (4 * (k + 1)))
        em.label("L_dbgx%d" % em.nlab)
        em.nlab += 1
        return
    e("s_mov_b32 s52, s46")
    e("s_mov_b32 s53, s47")
    e("s_mov_b32 s54, 0x100000")
    e("s_mov_b32 s55, 0x00020000")
    e("s_lshl_b32 s50, s2, 3")
    e("s_add_u32 s50, s50, s%d" % S_WAVE)
    e("s_lshl_b32 s50, s50, 6")
    e("s_mov_b64 exec, 1")
    e("v_mov_b32 v250, 0")
    for k in range(16):
        e("v_mov_b32 v251, s%d" % (60 + k))
        e("buffer_store_dword v251, v250, s[52:55], s50 offen offset:%d" % (4 * k))


def gate_tile(em, j, zreg):
    T = BREG
    for a01 in range(2):
        f = acc(a01, j)
        g = acc(2 + a01, j)
        t1 = [T + 0 + r for r in range(4)]
        t2 = [T + 4 + r for r in range(4)]
        d1 = [T + 8 + r for r in range(4)]
        zz = [T + 12 + r for r in range(4)]
        for r in range(4):
            em.e("v_mul_f32 v%d, s%d, v%d" % (t1[r], S_C1, f + r))
        for r in range(4):
            em.e("v_mul_f32 v%d, s%d, v%d" % (t2[r], S_C2, g + r))
        for r in range(4):
            em.e("v_min_f32 v%d, s%d, v%d" % (t1[r], S_CL, t1[r]))
        for r in range(4):
            em.e("v_exp_f32 v%d, v%d" % (t2[r], t2[r]))
        for r in range(4):
            em.e("v_exp_f32 v%d, v%d" % (t1[r], t1[r]))
        em.e("s_nop 0")
        for r in range(4):
            em.e("v_add_f32 v%d, 1.0, v%d" % (d1[r], t1[r]))
        for r in range(4):
            em.e("v_fma_f32 v%d, v%d, v%d, v%d" % (d1[r], d1[r], t2[r], d1[r]))
        for r in range(4):
            em.e("v_rcp_f32 v%d, v%d" % (d1[r], d1[r]))
        for r in range(4):
            em.e("v_sub_f32 v%d, 1.0, v%d" % (t1[r], t1[r]))
        for r in range(4):
            em.e("v_mul_f32 v%d, v%d, v%d" % (zz[r], t1[r], d1[r]))
        em.e("v_cvt_pk_bf16_f32 v%d, v%d, v%d" % (zreg + 2 * a01, zz[0], zz[1]))
        em.e("v_cvt_pk_bf16_f32 v%d, v%d, v%d" % (zreg + 2 * a01 + 1, zz[2], zz[3]))


def build(opts):
    em = Em()
    e = em.e
    GR = [int(v) for v in str(opts.get("gr", "0,8,16,24")).split(",")]
    GD = [int(v) for v in str(opts.get("gd", "6,14,22,30")).split(",")]
    XL = int(opts.get("xl", 2))
    XR = [int(v) for v in str(opts.get("xr", "0,1,2,3,4")).split(",")]
    XG = [int(v) for v in str(opts.get("xg", "2,2,2,2,2")).split(",")]
    RS = int(opts.get("rs", 7))
    assert RS >= max(XR) + 3 or (RS == max(XR) + 2)
    e("s_cmp_ge_u32 s2, 250")
    e("s_cbranch_scc1 L_end")
    e("s_load_dwordx4 s[4:7], s[0:1], 0")
    e("s_load_dwordx4 s[8:11], s[0:1], 16")
    if opts.get("stamp"):
        e("s_load_dwordx2 s[46:47], s[0:1], 40")
        for k in range(16):
            e("s_mov_b32 s%d, 0" % (60 + k))
        e("s_memrealtime s[58:59]")
        e("s_memtime s[50:51]")
    e("v_and_b32 v0, 0x3ff, v0")
    e("v_lshrrev_b32 v1, 6, v0")
    CPF = int(opts.get("cpf", 0))
    if CPF:
        e("s_getpc_b64 s[98:99]")
        em.label("L_pc")
        e("v_and_b32 v2, 1, v0")
        e("v_lshlrev_b32 v2, 7, v2")
        e("v_lshl_add_u32 v2, v1, 8, v2")
        e("s_lshr_b32 s36, s2, 3")
        e("s_lshl_b32 s36, s36, 10")
        e("s_add_u32 s36, s36, 2048")
        e("v_lshl_add_u32 v3, v1, 7, s36")
        e("v_and_b32 v4, 32, v0")
        e("v_cmp_eq_u32 vcc, 0, v4")
        e("v_cndmask_b32 v2, v3, v2, vcc")
        e("v_min_u32 v2, L_end-L_pc, v2")
        e("global_load_dword v%d, v2, s[98:99]" % V_DUMMY)
    e("v_and_b32 v%d, 63, v0" % V_LANE)
    e("v_readfirstlane_b32 s%d, v1" % S_WAVE)
    L = V_LANE
    e("v_lshrrev_b32 v5, 3, v%d" % L)
    e("v_lshlrev_b32 v5, 9, v5")
    e("v_and_b32 v6, 7, v%d" % L)
    e("v_lshl_add_u32 v%d, v6, 4, v5" % V_XD)
    e("s_lshl_b32 s%d, s2, 16" % S_G0)
    e("s_cmp_eq_u32 s2, 0")
    e("s_cselect_b32 s%d, 1, 0" % S_T3)
    e("s_cmp_eq_u32 s2, 125")
    e("s_cselect_b32 s%d, 1, s%d" % (S_T3, S_T3))
    e("s_and_b32 s%d, s%d, 3" % (S_T2, S_WAVE))
    e("s_cmp_eq_u32 s%d, 0" % S_T2)
    e("s_cselect_b32 s%d, s%d, 0" % (S_T3, S_T3))
    e("s_mul_i32 s%d, s%d, %d" % (S_XM, S_T2, PIECE))
    e("s_lshl_b32 s%d, s%d, 12" % (S_XS, S_T2))
    e("s_add_u32 s%d, s%d, s%d" % (S_XS, S_XS, S_G0))
    e("s_sub_u32 s%d, s%d, 4096" % (S_XS, S_XS))
    e("s_lshr_b32 s%d, s%d, 2" % (S_ISL, S_WAVE))
    e("v_lshrrev_b32 v1, 4, v%d" % L)
    e("v_bfe_u32 v2, v%d, 2, 2" % L)
    e("v_and_b32 v3, 3, v%d" % L)
    e("v_and_b32 v4, 1, v1")
    e("v_lshlrev_b32 v5, 13, v1")
    e("v_lshl_add_u32 v5, v2, 10, v5")
    e("v_lshlrev_b32 v6, 1, v4")
    e("v_xor_b32 v6, v6, v3")
    e("v_lshl_add_u32 v5, v6, 4, v5")
    e("s_lshl_b32 s%d, s%d, 6" % (S_T0, S_WAVE))
    e("v_add_u32 v%d, s%d, v5" % (V_WD0, S_T0))
    e("v_add_u32 v%d, 0x1000, v%d" % (V_WD1, V_WD0))
    e("s_lshl_b32 s%d, s%d, 13" % (S_RING, S_WAVE))
    e("s_add_u32 s%d, s%d, %d" % (S_RING, S_RING, RING0))
    for (sr, p, nbytes) in ((S_X, 4, 16384000), (S_X0, 4, 16384000), (S_W, 6, 1310720), (S_WO, 8, 131072), (S_OUT, 10, 16384000)):
        e("s_mov_b32 s%d, %d" % (sr + 2, nbytes))
        e("s_mov_b32 s%d, 0x00020000" % (sr + 3))
    e("s_cmp_eq_u32 s%d, 1" % S_T3)
    e("s_cselect_b32 s%d, 0, s%d" % (S_X0 + 2, S_X0 + 2))
    e("s_waitcnt lgkmcnt(0)")
    if opts.get("stamp"):
        e("s_mov_b32 s60, s58")
        e("s_mov_b32 s62, s50")
    pstamp(em, opts, 11)
    for (sr, p) in ((S_X, 4), (S_X0, 4), (S_W, 6), (S_WO, 8), (S_OUT, 10)):
        e("s_mov_b64 s[%d:%d], s[%d:%d]" % (sr, sr + 1, p, p + 1))

    def xpiece(i):
        return [("op", "s_add_u32 m0, s%d, %d" % (S_XM, 4 * i * PIECE)),
                ("op", "s_add_u32 s%d, s%d, %d" % (S_T2, S_XS, 4 * i * 4096)),
                ("op", "buffer_load_dwordx4 v%d, %s, s%d offen lds" % (V_XD, srd(S_X0 if i == 0 else S_X), S_T2))]

    def soff_const(step):
        it, rel = divmod(step, 10)
        kh, tap = divmod(rel, 5)
        return it, tap * 262144 + kh * 32768

    def dma_items(step, u):
        fg, h = u >> 1, u & 1
        slot = (4 * step + u) % NRING
        m0 = ("op", "s_add_u32 m0, s%d, %d" % (S_RING, slot * 1024 - fg * 512)) if slot * 1024 - fg * 512 >= 0 else \
             ("op", "s_sub_u32 m0, s%d, %d" % (S_RING, fg * 512 - slot * 1024))
        d = ("vm", "buffer_load_dwordx4 v%d, %s, s%d offen offset:%d lds" % (
            V_WD1 if h else V_WD0, srd(S_W), S_SOFF, fg * 512), ("u", step, u))
        return m0, d

    def tr_items(step, u):
        fg, h = u >> 1, u & 1
        slot = (4 * step + u) % NRING
        ab = AREG + 16 * (step % 2)
        out = [("wvm", ("u", step, u))]
        for a01 in range(2):
            d = ab + 4 * (2 * fg + a01) + 2 * h
            out.append(("lg", "ds_read_b64_tr_b16 %s, v%d offset:%d" % (vr(d, 2), V_A1 if a01 else V_A0, slot * 1024),
                        ("a", step, u, a01)))
        return out

    def ring_fill(st, track=True):
        e("s_mov_b32 s%d, %d" % (S_SOFF, soff_const(st)[1]))
        for u in range(4):
            m0, d = dma_items(st, u)
            em.item(m0)
            e("s_nop 0")
            if track:
                em.item(d)
            else:
                e(d[1])

    LPRE = int(opts.get("lpre", 1))
    XPW = int(opts.get("xpw", 0))
    e("s_lshr_b32 s%d, s2, 3" % S_I)
    e("s_cmp_eq_u32 s%d, 0" % S_ISL)
    e("s_cbranch_scc1 L_hpro")
    for i in range(4):
        for it in xpiece(i):
            em.item(it)
    e("s_cmp_lg_u32 s%d, 4" % S_WAVE)
    e("s_cbranch_scc1 L_ppro")
    for it in xpiece(4):
        em.item(it)
    e("s_branch L_ppro")
    em.label("L_hpro")
    ring_fill(0)
    ring_fill(1)
    em.label("L_ppro")
    pstamp(em, opts, 12)
    e("s_and_b32 s%d, s%d, 3" % (S_T2, S_WAVE))
    SPF = str(opts.get("spf", ""))
    if SPF:
        e("s_and_b32 s%d, s%d, 1" % (S_T0, S_T2))
        e("s_lshl_b32 s%d, s%d, 7" % (S_T0, S_T0))
        e("s_lshr_b32 s%d, s%d, 1" % (S_T1, S_T2))
        e("s_lshl_b32 s%d, s%d, 9" % (S_T1, S_T1))
        e("s_add_u32 s%d, s%d, s%d" % (S_T0, S_T0, S_T1))
        e("s_lshl_b32 s%d, s%d, 8" % (S_T1, S_ISL))
        e("s_add_u32 s%d, s%d, s%d" % (S_T0, S_T0, S_T1))
        e("s_lshl_b32 s%d, s%d, 10" % (S_P0, S_I))
        e("s_add_u32 s%d, s%d, s%d" % (S_P0, S_P0, S_T0))
        e("s_add_u32 s%d, s%d, %d" % (S_P1, S_P0, 229376))
        e("s_add_u32 s%d, s%d, %d" % (S_P2, S_P0, 1048576))
        q0, q1 = [int(v) for v in SPF.split("-")]
        for q in range(q0, q1):
            cs, tap = divmod(q, 5)
            c1 = tap * 262144 + cs * 32768 - q * 1024
            e("s_cmp_ge_u32 s%d, %d" % (S_I, q))
            if tap:
                imm = c1 - 229376
                e("s_cselect_b32 s%d, s%d, s%d" % (S_T0, S_P1, S_P0))
            else:
                imm = c1
                e("s_cselect_b32 s%d, s%d, s%d" % (S_T0, S_P0, S_P2))
            assert imm >= 0
            e("s_buffer_load_dword s%d, %s, s%d offset:%d" % (S_PD, srd(S_W), S_T0, imm))
    pstamp(em, opts, 13)
    e("s_add_u32 s%d, s%d, 1" % (S_T0, S_ISL))
    e("s_mul_i32 s%d, s%d, %d" % (S_T1, S_T0, CHUNK))
    e("s_add_u32 s%d, s%d, s%d" % (S_XM, S_XM, S_T1))
    e("s_lshl_b32 s%d, s%d, 7" % (S_T1, S_T0))
    e("s_add_u32 s%d, s%d, s%d" % (S_XS, S_XS, S_T1))
    e("s_lshl_b32 s%d, s%d, 2" % (S_T1, S_T0))
    e("s_add_u32 s%d, s%d, %d" % (S_T1, S_T1, FLG + F_X))
    e("v_mov_b32 v%d, s%d" % (V_SG, S_T1))
    e("s_mov_b32 s%d, 1" % S_HOOK)
    e("s_cmp_eq_u32 s%d, 0" % S_T2)
    e("s_cselect_b32 s%d, 1, 0" % S_HOOK2)
    XPF = int(opts.get("xpf", 0))
    if XPF:
        e("s_mul_i32 s%d, s%d, %d" % (S_T0, S_T2, 34 * 512))
        e("s_add_u32 s%d, s%d, s%d" % (S_T0, S_T0, S_G0))
        e("s_sub_u32 s%d, s%d, %d" % (S_T0, S_T0, 4096 - 128))
        for k, dst in ((0, V_PFA), (1, V_PFB)):
            e("v_add_u32 v5, %d, v%d" % (64 * k, L))
            e("v_mul_u32_u24 v6, 0x788, v5")
            e("v_lshrrev_b32 v6, 16, v6")
            e("v_mul_u32_u24 v7, 34, v6")
            e("v_sub_u32 v7, v5, v7")
            e("v_lshlrev_b32 v7, 9, v7")
            e("v_lshl_add_u32 v7, v6, 7, v7")
            e("v_add_u32 v7, s%d, v7" % S_T0)
            e("v_max_i32 v7, 0, v7")
            e("v_cmp_gt_u32 vcc, 102, v5")
            e("v_mov_b32 v6, 0x7fffff00")
            e("v_cndmask_b32 v%d, v6, v7, vcc" % dst)

    def xprefetch():
        n = 0
        for v in (V_PFA, V_PFB):
            for hh in range(XPF):
                e("buffer_load_dword v%d, v%d, %s, 0 offen offset:%d" % (V_DUMMY, v, srd(S_X), 64 * hh))
                n += 1
        return n
    e("s_lshl_b32 s%d, s%d, 13" % (S_T0, S_I))
    e("v_lshlrev_b32 v5, 7, v%d" % L)
    e("v_add_u32 v%d, s%d, v5" % (V_PFC, S_T0))
    e("s_mov_b32 s%d, 0x%08x" % (S_C1, f32bits(-2.0 * 1.4426950408889634)))
    e("s_mov_b32 s%d, 0x%08x" % (S_C2, f32bits(-1.4426950408889634)))
    e("s_mov_b32 s%d, 0x%08x" % (S_CL, f32bits(30.0)))
    e("v_lshlrev_b32 v5, 8, v1")
    e("v_lshl_add_u32 v5, v2, 6, v5")
    e("v_lshl_add_u32 v6, v4, 5, v5")
    e("v_lshl_add_u32 v6, v3, 3, v6")
    e("v_add_u32 v%d, s%d, v6" % (V_A0, S_RING))
    e("v_xor_b32 v6, 32, v6")
    e("v_add_u32 v%d, s%d, v6" % (V_A1, S_RING))
    e("s_and_b32 s%d, s%d, 3" % (S_T2, S_WAVE))
    e("s_mul_i32 s%d, s%d, %d" % (S_WOR, S_T2, NWO * 1024))
    e("s_add_u32 s%d, s%d, %d" % (S_WOR, S_WOR, WOB))
    e("v_lshl_add_u32 v6, v3, 4, v5")
    e("v_add_u32 v%d, s%d, v6" % (V_OA, S_WOR))
    e("v_lshrrev_b32 v6, 2, v%d" % L)
    e("v_lshlrev_b32 v6, 9, v6")
    e("v_lshl_add_u32 v6, v3, 4, v6")
    e("s_lshl_b32 s%d, s%d, 7" % (S_T2, S_T2))
    e("v_add_u32 v%d, s%d, v6" % (V_WOD, S_T2))
    e("v_and_b32 v7, 15, v%d" % L)
    e("s_mov_b32 s%d, %d" % (S_T1, PIECE))
    e("v_mul_lo_u32 v5, v7, s%d" % S_T1)
    e("v_lshl_add_u32 v%d, v1, 4, v5" % V_X)
    e("v_lshlrev_b32 v5, 12, v7")
    e("v_lshl_add_u32 v5, v1, 4, v5")
    e("v_add_u32 v%d, s%d, v5" % (V_OUT, S_T2))
    e("v_lshlrev_b32 v5, 4, v%d" % L)
    e("v_add_u32 v%d, %d, v5" % (V_Z, RING0))
    e("v_add_u32 v%d, s%d, v5" % (V_ZW, S_RING))
    e("v_mov_b32 v%d, %d" % (V_FA, FLG))
    e("v_mov_b32 v%d, %d" % (V_FL, FLG + F_X + 4))
    e("v_mov_b32 v%d, 1" % V_ONE)
    e("s_cmp_lg_u32 s%d, 4" % S_WAVE)
    e("s_cbranch_scc1 L_nofl")
    e("v_lshlrev_b32 v5, 2, v%d" % L)
    e("v_add_u32 v5, %d, v5" % FLG)
    e("v_cmp_eq_u32 vcc, 4, v%d" % L)
    e("v_mov_b32 v6, 0")
    e("s_nop 0")
    e("v_cndmask_b32 v6, v6, v%d, vcc" % L)
    e("ds_write_b32 v5, v6")
    em.label("L_nofl")
    for r in range(128):
        e("v_mov_b32 v%d, 0" % (ACC + r))
    e("s_mov_b32 s%d, 0" % S_IT)
    e("s_mov_b32 s%d, 0" % S_CNT)
    pstamp(em, opts, 14)

    def soff_item(step, cur):
        it, c = soff_const(step)
        return ("op", "s_add_u32 s%d, s%d, %d" % (S_SOFF, S_IT, c + (it - cur) * 65536))

    def cold_a():
        em.item(soff_item(2, 0))
        for u in range(4):
            for it in tr_items(0, u):
                em.item(it)
        for u in range(4):
            m0, d = dma_items(2, u)
            em.item(m0)
            em.wait_lg(("a", 0, u, 1))
            e("s_nop 0")
            em.item(d)

    e("s_setprio 3")
    e("s_cmp_eq_u32 s%d, 0" % S_ISL)
    e("s_cbranch_scc1 L_hw")
    for st in range(LPRE):
        ring_fill(st, False)
    npf = xprefetch() if XPW == 0 else 0
    e("s_waitcnt vmcnt(%d) lgkmcnt(0)" % (4 * LPRE + npf))
    e("s_barrier")
    for st in range(LPRE, 2):
        ring_fill(st, False)
    if XPW == 1:
        xprefetch()
    sv = (list(em.vm), list(em.lg))
    cold_a()
    em.vm, em.lg = sv
    if XPW == 2:
        xprefetch()
    e("s_branch L_bar")
    em.label("L_hw")
    cold_a()
    pstamp(em, opts, 15)
    e("s_barrier")
    em.label("L_bar")
    stamp(em, opts, 3)
    pcollect(em, opts)

    slotkey = [None] * 8

    def bkey(step, j):
        cs, tap = divmod(step, 5)
        sidx = j - 2 * tap + 8
        return sidx & 7, (cs, sidx)

    def bread(step, j):
        slot, key = bkey(step, j)
        if slotkey[slot] == key:
            return None
        slotkey[slot] = key
        cs, tap = divmod(step, 5)
        sidx = j - 2 * tap + 8
        off = (sidx >> 3) * PIECE + (sidx & 7) * 128 + (cs & 1) * 64
        return ("lg", "ds_read_b128 %s, v%d offset:%d" % (vr(BREG + 4 * slot, 4), V_X, off), ("b", key))

    for j in range(7, -1, -1):
        em.item(bread(0, j))
    if int(opts.get("order", 0)) in (0, 2):
        e("s_waitcnt lgkmcnt(6)")
        em.lg = em.lg[-6:]
    else:
        e("s_waitcnt lgkmcnt(0)")
        em.lg = []
    stamp(em, opts, 4)

    def hook(items, lab):
        return [("op", "s_cmp_eq_u32 s%d, 0" % S_HOOK), ("op", "s_cbranch_scc1 %s" % lab)] + items + [("lab", lab)]

    def signal(c):
        return [("op", "ds_add_u32 v%d, v%d offset:%d" % (V_FA, V_ONE, F_X + 4 * c))]

    def gstep(step):
        rel = step % 10
        cur = step // 10
        ab = AREG + 16 * (step % 2)
        gaps = [[] for _ in range(33)]
        gaps[0].append(soff_item(step + 3, cur))
        if rel == 7:
            gaps[0].append(("op", "s_cmp_eq_u32 s%d, 3" % S_CNT))
            gaps[0].append(("op", "s_cselect_b32 s%d, 0, s%d" % (S_W + 2, S_W + 2)))
        for u in range(4):
            for it in tr_items(step + 1, u):
                gaps[GR[u]].append(it)
            m0, d = dma_items(step + 3, u)
            gaps[GD[u] - 1].append(m0)
            gaps[GD[u]].append(("wlg", ("a", step + 1, u, 1)))
            gaps[GD[u]].append(d)
        sig = [("op", "s_mov_b64 exec, 1"),
               ("op", "ds_add_u32 v%d, v%d" % (V_SG, V_ONE)),
               ("op", "s_mov_b64 exec, -1")]
        for i in range(5):
            if XR[i] == rel and not opts.get("nox"):
                lab = "L_hx%d" % i
                gaps[XG[i]] += [("op", "s_cmp_eq_u32 s%d, 0" % (S_HOOK2 if i == 4 else S_HOOK)), ("op", "s_cbranch_scc1 %s" % lab)] + xpiece(i) + [("lab", lab)]
        if rel == RS:
            gaps[2] += hook(sig, "L_hsig")
        if rel == 8:
            gaps[10].append(("lg", "ds_read_b32 v%d, v%d" % (V_F, V_FL), ("fl", step)))
        pre = []
        if rel == 9:
            pre = [("wlg", ("fl", step - 1)),
                   ("op", "v_readfirstlane_b32 s%d, v%d" % (S_T0, V_F)),
                   ("op", "v_add_u32 v%d, %d, v%d" % (V_X, CHUNK, V_X)),
                   ("op", "s_cmp_eq_u32 s%d, 4" % S_T0),
                   ("op", "s_cbranch_scc1 L_pok"),
                   ("lab", "L_pspin"),
                   ("op", "ds_read_b32 v%d, v%d" % (V_F, V_FL)),
                   ("op", "s_waitcnt lgkmcnt(0)"),
                   ("op", "v_readfirstlane_b32 s%d, v%d" % (S_T0, V_F)),
                   ("op", "s_cmp_eq_u32 s%d, 4" % S_T0),
                   ("op", "s_cbranch_scc0 L_pspin"),
                   ("lab", "L_pok"),
                   ("op", "v_add_u32 v%d, 4, v%d" % (V_FL, V_FL))]
        for it in pre:
            em.item(it)
        nxt = step + 1
        pending = {}
        for j2 in range(8):
            slot, key = bkey(nxt, j2)
            pending[slot] = j2
        k = 0
        ORD = int(opts.get("order", 0))
        if ORD == 0:
            seq = [(j, a) for j in range(7, -1, -1) for a in range(4)]
        elif ORD == 1:
            seq = [(j, a) for a in range(4) for j in range(7, -1, -1)]
        elif ORD == 2:
            seq = [(j, (a if (j & 1) else 3 - a)) for j in range(7, -1, -1) for a in range(4)]
        elif ORD == 3:
            seq = [(j, 2 * ah + a) for ah in range(2) for j in range(7, -1, -1) for a in range(2)]
        last = {}
        for idx, (j, a) in enumerate(seq):
            last[j] = idx
        for idx, (j, a) in enumerate(seq):
            slot, key = bkey(step, j)
            em.wait_lg(("b", key))
            em.wait_lg(("a", step, 2 * (a >> 1) + 1, a & 1))
            em.e("v_mfma_f32_16x16x32_bf16 %s, %s, %s, %s" % (
                vr(acc(a, j), 4), vr(ab + 4 * a, 4), vr(BREG + 4 * slot, 4), vr(acc(a, j), 4)))
            if last[j] == idx and slot in pending:
                it = bread(nxt, pending[slot])
                if it:
                    em.item(it)
            for it in gaps[k]:
                em.item(it)
            k += 1

    start = len(em.lines)
    for s in range(0, 10):
        gstep(s)
    mid = len(em.lines)
    for s in range(10, 20):
        gstep(s)
    end = len(em.lines)
    b1 = em.lines[start:mid]
    b2 = em.lines[mid:end]
    if b1 != b2:
        import difflib
        for l in difflib.unified_diff(b1, b2, lineterm="", n=0):
            print("DIFF", l)
    b1 = b2
    em.lines = em.lines[:start]
    if opts.get("nodma"):
        b1 = [l for l in b1 if not ("s[16:19]" in l) and "vmcnt" not in l]
    if opts.get("nomfma"):
        b1 = [l for l in b1 if "v_mfma" not in l]
    em.label("L_loop")
    em.lines += b1
    if opts.get("stamp") == 2:
        e("s_memtime s[80:81]")
        e("s_mov_b32 s71, s72")
        e("s_mov_b32 s72, s73")
        e("s_mov_b32 s73, s74")
        e("s_waitcnt lgkmcnt(0)")
        e("s_mov_b32 s74, s80")
    e("s_add_u32 s%d, s%d, 65536" % (S_IT, S_IT))
    e("s_add_u32 s%d, s%d, 1" % (S_CNT, S_CNT))
    e("s_add_u32 s%d, s%d, %d" % (S_XM, S_XM, CHUNK))
    e("s_add_u32 s%d, s%d, 128" % (S_XS, S_XS))
    e("v_add_u32 v%d, 4, v%d" % (V_SG, V_SG))
    e("s_cmp_gt_u32 s%d, s%d" % (S_CNT, S_ISL))
    e("s_cselect_b32 s%d, 0, s%d" % (S_HOOK, S_HOOK))
    e("s_cselect_b32 s%d, 0, s%d" % (S_HOOK2, S_HOOK2))
    e("s_mul_i32 s%d, s%d, %d" % (S_T0, S_ISL, XL - 1))
    e("s_add_u32 s%d, s%d, 1" % (S_T0, S_T0))
    e("s_cmp_lg_u32 s%d, s%d" % (S_T0, S_CNT))
    e("s_cbranch_scc1 L_nsp")
    e("s_setprio 2")
    e("s_cmp_eq_u32 s%d, 0" % S_ISL)
    e("s_cbranch_scc1 L_nsp")
    e("s_setprio 1")
    em.label("L_nsp")
    e("s_cmp_lt_u32 s%d, 4" % S_CNT)
    e("s_cbranch_scc1 L_loop")
    e("s_waitcnt lgkmcnt(0)")
    em.lg = []
    stamp(em, opts, 5)
    e("s_cmp_lg_u32 s%d, 0" % S_ISL)
    e("s_cbranch_scc1 L_low")
    vm_after_loop = list(em.vm)

    e("s_setprio 0")

    def wo_dma(U):
        ks, u = divmod(U, 4)
        ch, h = u >> 1, u & 1
        slot = U % NWO
        off = slot * 1024 - ch * 64
        m0 = ("op", "s_add_u32 m0, s%d, %d" % (S_WOR, off)) if off >= 0 else ("op", "s_sub_u32 m0, s%d, %d" % (S_WOR, -off))
        so = ("op", "s_mov_b32 s%d, %d" % (S_SOFF, (32 * ks + 16 * h) * 512))
        d = ("vm", "buffer_load_dwordx4 v%d, %s, s%d offen offset:%d lds" % (V_WOD, srd(S_WO), S_SOFF, ch * 64), ("o", U))
        return [m0, so, d]

    def wo_tr(U):
        ks, u = divmod(U, 4)
        ch, h = u >> 1, u & 1
        slot = U % NWO
        ab = AREG + 16 * (ks % 4)
        out = [("wvm", ("o", U))]
        for a1 in range(2):
            d = ab + 4 * (2 * ch + a1) + 2 * h
            out.append(("lg", "ds_read_b64_tr_b16 %s, v%d offset:%d" % (vr(d, 2), V_OA, slot * 1024 + a1 * 8), ("oa", U, a1)))
        return out

    for U in range(NWO):
        for it in wo_dma(U):
            em.item(it)
    nextdma = NWO
    for t, j in enumerate(range(7, -1, -1)):
        zreg = BREG + 16 + 4 * (t % 4)
        gate_tile(em, j, zreg)
        if t == 0:
            em.wait_vm(vm_after_loop[-1])
        em.lgop("ds_write_b128 v%d, %s offset:%d" % (V_ZW, vr(zreg, 4), j * 1024), ("zw", j))
        if t >= 1:
            em.wait_lg(("oa", 2 * t - 1, 1))
            for U in (nextdma, nextdma + 1):
                for it in wo_dma(U):
                    em.item(it)
            nextdma += 2
        for U in (2 * t, 2 * t + 1):
            for it in wo_tr(U):
                em.item(it)
    e("s_mov_b64 exec, 1")
    em.lgop("ds_add_u32 v%d, v%d offset:%d" % (V_FA, V_ONE, F_ZH), ("zf",))
    e("s_mov_b64 exec, -1")
    em.wait_lg(("oa", 15, 1))
    for U in (nextdma, nextdma + 1):
        for it in wo_dma(U):
            em.item(it)
    nextdma += 2
    stamp(em, opts, 6)
    em.label("L_zhs")
    e("ds_read_b32 v%d, v%d offset:%d" % (V_F, V_FA, F_ZH))
    e("s_waitcnt lgkmcnt(0)")
    em.lg = []
    e("v_readfirstlane_b32 s%d, v%d" % (S_T0, V_F))
    e("s_cmp_eq_u32 s%d, 4" % S_T0)
    e("s_cbranch_scc0 L_zhs")
    if opts.get("hp2"):
        e("s_setprio 2")
    stamp(em, opts, 7)

    def zread(ks, j, slot):
        return ("lg", "ds_read_b128 %s, v%d offset:%d" % (vr(BREG + 4 * slot, 4), V_Z, ks * 8192 + j * 1024), ("z", ks, j))

    for j in range(7, -1, -1):
        em.item(zread(0, j, j))
    for ks in range(4):
        ab = AREG + 16 * ks
        gaps = [[] for _ in range(33)]
        if ks >= 1:
            for u in range(4):
                U = 4 * (ks + 3) + u
                for it in wo_tr(U):
                    gaps[8 * u].append(it)
                if nextdma < 32:
                    gaps[8 * u + 6].append(("wlg", ("oa", U, 1)))
                    for it in wo_dma(nextdma):
                        gaps[8 * u + 6].append(it)
                    nextdma += 1
        k = 0
        for j in range(7, -1, -1):
            em.wait_lg(("z", ks, j))
            for a in range(4):
                c = "0" if ks == 0 else vr(acc(a, j), 4)
                e("v_mfma_f32_16x16x32_bf16 %s, %s, %s, %s" % (vr(acc(a, j), 4), vr(ab + 4 * a, 4), vr(BREG + 4 * j, 4), c))
                if a == 3 and ks < 3:
                    em.item(zread(ks + 1, j, j))
                for it in gaps[k]:
                    em.item(it)
                k += 1
    assert nextdma == 32, nextdma
    for u in range(4):
        for it in wo_tr(28 + u):
            em.item(it)
    stamp(em, opts, 8)

    def epi(j, t):
        for ch in range(2):
            tt = V_DUMMY + 4 * ((2 * t + ch) % 4) if False else BREG + 0
            tt = 240 + 4 * ((2 * t + ch) % 4)
            for a1 in range(2):
                aa = acc(2 * ch + a1, j)
                e("v_cvt_pk_bf16_f32 v%d, v%d, v%d" % (tt + 2 * a1, aa, aa + 1))
                e("v_cvt_pk_bf16_f32 v%d, v%d, v%d" % (tt + 2 * a1 + 1, aa + 2, aa + 3))
            e("buffer_store_dwordx4 %s, v%d, %s, s%d offen offset:%d %s" % (
                vr(tt, 4), V_OUT, srd(S_OUT), S_G0, j * 512 + ch * 64, str(opts.get("sf", "")).replace("+", " ")))

    prev = None
    for t, j in enumerate(range(7, -1, -1)):
        sb = 4 * (t % 2)
        em.label("L_zl%d" % j)
        e("ds_read_b32 v%d, v%d offset:%d" % (V_F, V_FA, F_ZL + 4 * j))
        for k4 in range(4):
            e(zread(4 + k4, j, sb + k4)[1])
        if prev is not None:
            pass
        e("s_waitcnt lgkmcnt(0)")
        em.lg = []
        e("v_readfirstlane_b32 s%d, v%d" % (S_T0, V_F))
        e("s_cmp_eq_u32 s%d, 4" % S_T0)
        e("s_cbranch_scc0 L_zl%d" % j)
        for k4 in range(4):
            ab = AREG + 16 * k4
            for a in range(4):
                e("v_mfma_f32_16x16x32_bf16 %s, %s, %s, %s" % (vr(acc(a, j), 4), vr(ab + 4 * a, 4), vr(BREG + 4 * (sb + k4), 4), vr(acc(a, j), 4)))
        e("s_nop 7")
        epi(j, t)
    stamp(em, opts, 9)
    if opts.get("stamp"):
        e("s_waitcnt vmcnt(0)")
    stamp(em, opts, 10)
    stamp_out(em, opts)
    e("s_endpgm")

    em.label("L_low")
    em.vm = []
    em.lg = []
    e("s_setprio 3")
    for t, j in enumerate(range(7, -1, -1)):
        zreg = BREG + 16 + 4 * (t % 4)
        gate_tile(em, j, zreg)
        if t == 0:
            e("s_waitcnt vmcnt(0)")
        e("ds_write_b128 v%d, %s offset:%d" % (V_ZW, vr(zreg, 4), j * 1024))
        e("s_mov_b64 exec, 1")
        e("ds_add_u32 v%d, v%d offset:%d" % (V_FA, V_ONE, F_ZL + 4 * j))
        e("s_mov_b64 exec, -1")
    e("s_waitcnt lgkmcnt(0)")
    stamp(em, opts, 6)
    stamp_out(em, opts)
    em.label("L_end")
    e("s_endpgm")

    txt = HEADER % (LDS_TOTAL, NAME, NAME, NAME) + "\n".join(em.lines) + FOOTER % NAME
    return txt


if __name__ == "__main__":
    out = sys.argv[1] if len(sys.argv) > 1 else "cdna_kernels/%s.s" % NAME
    opts = {}
    for a in sys.argv[2:]:
        k, v = a.split("=")
        opts[k] = int(v) if v.isdigit() else v
    open(out, "w").write(build(opts))
    print("wrote", out)
```

```python
import sys
import struct

NAME = "standalone__autoregressive_conv_wavenet__speech"

HEADER = """; Kernarg layout for this problem (48 bytes, ptrs only, base s[0:1]):
; @launch grid=(250,1,1) block=(512,1,1) lds=%d
.amdgcn_target "amdgcn-amd-amdhsa--gfx950"
.text
.globl %s_kernel
.p2align 8
.type %s_kernel,@function
%s_kernel:
"""

FOOTER = """
.section .rodata,"a"
.p2align 6
.amdhsa_kernel %s_kernel
  .amdhsa_next_free_vgpr 256
  .amdhsa_next_free_sgpr 102
  .amdhsa_accum_offset 256
  .amdhsa_group_segment_fixed_size 0
  .amdhsa_kernarg_size 48
  .amdhsa_user_sgpr_count 2
  .amdhsa_user_sgpr_kernarg_segment_ptr 1
  .amdhsa_system_sgpr_workgroup_id_x 1
.end_amdhsa_kernel
"""

PIECE = 1056
CHUNK = 17 * PIECE
XBYTES = 4 * CHUNK
RING0 = XBYTES
NRING = 8
WOB = RING0 + 65536
NWO = 6
FLG = WOB + 4 * NWO * 1024
LDS_TOTAL = FLG + 256
F_X = 0
F_ZH = 32
F_ZL = 64


def f32bits(x):
    return struct.unpack("<I", struct.pack("<f", x))[0]


ACC = 0
BREG = 128
AREG = 160
(V_WD0, V_WD1, V_A0, V_A1, V_X, V_Z, V_ZW, V_WOD, V_OA, V_OUT, V_XD, V_FL, V_F, V_ONE, V_PF, V_FA) = range(224, 240)
V_DUMMY = 240
V_LANE = 244
V_PFA, V_PFB, V_PFC, V_SG = 245, 246, 247, 248

S_X, S_W, S_WO, S_OUT, S_X0 = 12, 16, 20, 24, 28
S_WAVE = 32
S_IT = 33
S_CNT = 34
S_SOFF = 35
S_T0, S_T1, S_T2, S_T3 = 36, 37, 38, 39
S_G0 = 40
S_RING = 41
S_C1, S_C2, S_CL = 42, 43, 44
S_HOOK = 45
S_XM = 48
S_XS = 49
S_WOR = 56
S_ISL = 57
S_HOOK2 = 90
S_I, S_P0, S_P1, S_P2, S_PD = 93, 94, 95, 96, 97


def acc(a, j):
    return ACC + (j * 4 + a) * 4


def vr(b, n):
    return "v[%d:%d]" % (b, b + n - 1)


def srd(b):
    return "s[%d:%d]" % (b, b + 3)


class Em:
    def __init__(self):
        self.lines = []
        self.vm = []
        self.lg = []
        self.nlab = 0

    def e(self, s):
        self.lines.append("    " + s)

    def label(self, s):
        self.lines.append(s + ":")

    def vmop(self, s, tag):
        self.e(s)
        self.vm.append(tag)

    def lgop(self, s, tag):
        self.e(s)
        self.lg.append(tag)

    def wait_vm(self, tag):
        if tag in self.vm:
            idx = len(self.vm) - 1 - self.vm[::-1].index(tag)
            n = len(self.vm) - 1 - idx
            self.e("s_waitcnt vmcnt(%d)" % min(n, 63))
            self.vm = self.vm[idx + 1:]

    def wait_lg(self, tag):
        if tag in self.lg:
            idx = len(self.lg) - 1 - self.lg[::-1].index(tag)
            n = len(self.lg) - 1 - idx
            self.e("s_waitcnt lgkmcnt(%d)" % min(n, 15))
            self.lg = self.lg[idx + 1:]

    def wait_all(self):
        self.e("s_waitcnt vmcnt(0) lgkmcnt(0)")
        self.vm = []
        self.lg = []

    def item(self, it):
        if it[0] == "op":
            self.e(it[1])
        elif it[0] == "lab":
            self.label(it[1])
        elif it[0] == "vm":
            self.vmop(it[1], it[2])
        elif it[0] == "lg":
            self.lgop(it[1], it[2])
        elif it[0] == "wvm":
            self.wait_vm(it[1])
        elif it[0] == "wlg":
            self.wait_lg(it[1])


def stamp(em, opts, k, real=False):
    if not opts.get("stamp"):
        return
    em.e("%s s[50:51]" % ("s_memrealtime" if real else "s_memtime"))
    em.e("s_waitcnt lgkmcnt(0)")
    em.lg = []
    em.e("s_mov_b32 s%d, s50" % (60 + k))


def pstamp(em, opts, k):
    if opts.get("stamp") != 1:
        return
    em.e("s_memtime s[%d:%d]" % (80 + 2 * (k - 11), 81 + 2 * (k - 11)))


def pcollect(em, opts):
    if opts.get("stamp") != 1:
        return
    for k in range(11, 16):
        em.e("s_mov_b32 s%d, s%d" % (60 + k, 80 + 2 * (k - 11)))


def stamp_out(em, opts):
    if not opts.get("stamp"):
        return
    stamp(em, opts, 1, real=True)
    e = em.e
    if opts.get("dbg"):
        stamp(em, opts, 15)
        e("s_load_dwordx2 s[52:53], s[0:1], 32")
        e("s_waitcnt lgkmcnt(0)")
        e("s_mov_b32 s54, 256")
        e("s_mov_b32 s55, 0x00020000")
        e("s_mov_b64 exec, 1")
        e("v_mov_b32 v250, 0")
        e("v_mov_b32 v251, s61")
        e("buffer_atomic_umax v251, v250, s[52:55], 0 offen offset:0")
        e("s_not_b32 s50, s60")
        e("v_mov_b32 v251, s50")
        e("buffer_atomic_umax v251, v250, s[52:55], 0 offen offset:4")
        e("s_sub_u32 s50, s75, s62")
        e("v_mov_b32 v251, s50")
        e("buffer_atomic_umax v251, v250, s[52:55], 0 offen offset:8")
        e("s_sub_u32 s50, s61, s60")
        e("v_mov_b32 v251, s50")
        e("buffer_atomic_umax v251, v250, s[52:55], 0 offen offset:12")
        e("s_lshl_b32 s50, s2, 3")
        e("s_add_u32 s50, s50, s%d" % S_WAVE)
        e("s_cmp_lg_u32 s50, 800")
        e("s_cbranch_scc1 L_dbgx%d" % em.nlab)
        for k in range(3, 15):
            e("s_sub_u32 s50, s%d, s62" % (60 + k))
            e("v_mov_b32 v251, s50")
            e("buffer_store_dword v251, v250, s[52:55], 0 offen offset:%d" % (4 * (k + 1)))
        em.label("L_dbgx%d" % em.nlab)
        em.nlab += 1
        return
    e("s_mov_b32 s52, s46")
    e("s_mov_b32 s53, s47")
    e("s_mov_b32 s54, 0x100000")
    e("s_mov_b32 s55, 0x00020000")
    e("s_lshl_b32 s50, s2, 3")
    e("s_add_u32 s50, s50, s%d" % S_WAVE)
    e("s_lshl_b32 s50, s50, 6")
    e("s_mov_b64 exec, 1")
    e("v_mov_b32 v250, 0")
    for k in range(16):
        e("v_mov_b32 v251, s%d" % (60 + k))
        e("buffer_store_dword v251, v250, s[52:55], s50 offen offset:%d" % (4 * k))


def gate_tile(em, j, zreg):
    T = BREG
    for a01 in range(2):
        f = acc(a01, j)
        g = acc(2 + a01, j)
        t1 = [T + 0 + r for r in range(4)]
        t2 = [T + 4 + r for r in range(4)]
        d1 = [T + 8 + r for r in range(4)]
        zz = [T + 12 + r for r in range(4)]
        for r in range(4):
            em.e("v_mul_f32 v%d, s%d, v%d" % (t1[r], S_C1, f + r))
        for r in range(4):
            em.e("v_mul_f32 v%d, s%d, v%d" % (t2[r], S_C2, g + r))
        for r in range(4):
            em.e("v_min_f32 v%d, s%d, v%d" % (t1[r], S_CL, t1[r]))
        for r in range(4):
            em.e("v_exp_f32 v%d, v%d" % (t2[r], t2[r]))
        for r in range(4):
            em.e("v_exp_f32 v%d, v%d" % (t1[r], t1[r]))
        em.e("s_nop 0")
        for r in range(4):
            em.e("v_add_f32 v%d, 1.0, v%d" % (d1[r], t1[r]))
        for r in range(4):
            em.e("v_fma_f32 v%d, v%d, v%d, v%d" % (d1[r], d1[r], t2[r], d1[r]))
        for r in range(4):
            em.e("v_rcp_f32 v%d, v%d" % (d1[r], d1[r]))
        for r in range(4):
            em.e("v_sub_f32 v%d, 1.0, v%d" % (t1[r], t1[r]))
        for r in range(4):
            em.e("v_mul_f32 v%d, v%d, v%d" % (zz[r], t1[r], d1[r]))
        em.e("v_cvt_pk_bf16_f32 v%d, v%d, v%d" % (zreg + 2 * a01, zz[0], zz[1]))
        em.e("v_cvt_pk_bf16_f32 v%d, v%d, v%d" % (zreg + 2 * a01 + 1, zz[2], zz[3]))


def build(opts):
    em = Em()
    e = em.e
    GR = [int(v) for v in str(opts.get("gr", "0,8,16,24")).split(",")]
    GD = [int(v) for v in str(opts.get("gd", "6,14,22,30")).split(",")]
    XL = int(opts.get("xl", 2))
    XR = [int(v) for v in str(opts.get("xr", "0,1,2,3,4")).split(",")]
    XG = [int(v) for v in str(opts.get("xg", "2,2,2,2,2")).split(",")]
    RS = int(opts.get("rs", 7))
    assert RS >= max(XR) + 3 or (RS == max(XR) + 2)
    e("s_cmp_ge_u32 s2, 250")
    e("s_cbranch_scc1 L_end")
    e("s_load_dwordx4 s[4:7], s[0:1], 0")
    e("s_load_dwordx4 s[8:11], s[0:1], 16")
    if opts.get("stamp"):
        e("s_load_dwordx2 s[46:47], s[0:1], 40")
        for k in range(16):
            e("s_mov_b32 s%d, 0" % (60 + k))
        e("s_memrealtime s[58:59]")
        e("s_memtime s[50:51]")
    e("v_and_b32 v0, 0x3ff, v0")
    e("v_lshrrev_b32 v1, 6, v0")
    CPF = int(opts.get("cpf", 0))
    if CPF:
        e("s_getpc_b64 s[98:99]")
        em.label("L_pc")
        e("v_and_b32 v2, 1, v0")
        e("v_lshlrev_b32 v2, 7, v2")
        e("v_lshl_add_u32 v2, v1, 8, v2")
        e("s_lshr_b32 s36, s2, 3")
        e("s_lshl_b32 s36, s36, 10")
        e("s_add_u32 s36, s36, 2048")
        e("v_lshl_add_u32 v3, v1, 7, s36")
        e("v_and_b32 v4, 32, v0")
        e("v_cmp_eq_u32 vcc, 0, v4")
        e("v_cndmask_b32 v2, v3, v2, vcc")
        e("v_min_u32 v2, L_end-L_pc, v2")
        e("global_load_dword v%d, v2, s[98:99]" % V_DUMMY)
    e("v_and_b32 v%d, 63, v0" % V_LANE)
    e("v_readfirstlane_b32 s%d, v1" % S_WAVE)
    L = V_LANE
    e("v_lshrrev_b32 v5, 3, v%d" % L)
    e("v_lshlrev_b32 v5, 9, v5")
    e("v_and_b32 v6, 7, v%d" % L)
    e("v_lshl_add_u32 v%d, v6, 4, v5" % V_XD)
    e("s_lshl_b32 s%d, s2, 16" % S_G0)
    e("s_cmp_eq_u32 s2, 0")
    e("s_cselect_b32 s%d, 1, 0" % S_T3)
    e("s_cmp_eq_u32 s2, 125")
    e("s_cselect_b32 s%d, 1, s%d" % (S_T3, S_T3))
    e("s_and_b32 s%d, s%d, 3" % (S_T2, S_WAVE))
    e("s_cmp_eq_u32 s%d, 0" % S_T2)
    e("s_cselect_b32 s%d, s%d, 0" % (S_T3, S_T3))
    e("s_mul_i32 s%d, s%d, %d" % (S_XM, S_T2, PIECE))
    e("s_lshl_b32 s%d, s%d, 12" % (S_XS, S_T2))
    e("s_add_u32 s%d, s%d, s%d" % (S_XS, S_XS, S_G0))
    e("s_sub_u32 s%d, s%d, 4096" % (S_XS, S_XS))
    e("s_lshr_b32 s%d, s%d, 2" % (S_ISL, S_WAVE))
    e("v_lshrrev_b32 v1, 4, v%d" % L)
    e("v_bfe_u32 v2, v%d, 2, 2" % L)
    e("v_and_b32 v3, 3, v%d" % L)
    e("v_and_b32 v4, 1, v1")
    e("v_lshlrev_b32 v5, 13, v1")
    e("v_lshl_add_u32 v5, v2, 10, v5")
    e("v_lshlrev_b32 v6, 1, v4")
    e("v_xor_b32 v6, v6, v3")
    e("v_lshl_add_u32 v5, v6, 4, v5")
    e("s_lshl_b32 s%d, s%d, 6" % (S_T0, S_WAVE))
    e("v_add_u32 v%d, s%d, v5" % (V_WD0, S_T0))
    e("v_add_u32 v%d, 0x1000, v%d" % (V_WD1, V_WD0))
    e("s_lshl_b32 s%d, s%d, 13" % (S_RING, S_WAVE))
    e("s_add_u32 s%d, s%d, %d" % (S_RING, S_RING, RING0))
    for (sr, p, nbytes) in ((S_X, 4, 16384000), (S_X0, 4, 16384000), (S_W, 6, 1310720), (S_WO, 8, 131072), (S_OUT, 10, 16384000)):
        e("s_mov_b32 s%d, %d" % (sr + 2, nbytes))
        e("s_mov_b32 s%d, 0x00020000" % (sr + 3))
    e("s_cmp_eq_u32 s%d, 1" % S_T3)
    e("s_cselect_b32 s%d, 0, s%d" % (S_X0 + 2, S_X0 + 2))
    e("s_waitcnt lgkmcnt(0)")
    if opts.get("stamp"):
        e("s_mov_b32 s60, s58")
        e("s_mov_b32 s62, s50")
    pstamp(em, opts, 11)
    for (sr, p) in ((S_X, 4), (S_X0, 4), (S_W, 6), (S_WO, 8), (S_OUT, 10)):
        e("s_mov_b64 s[%d:%d], s[%d:%d]" % (sr, sr + 1, p, p + 1))

    def xpiece(i):
        return [("op", "s_add_u32 m0, s%d, %d" % (S_XM, 4 * i * PIECE)),
                ("op", "s_add_u32 s%d, s%d, %d" % (S_T2, S_XS, 4 * i * 4096)),
                ("op", "buffer_load_dwordx4 v%d, %s, s%d offen lds" % (V_XD, srd(S_X0 if i == 0 else S_X), S_T2))]

    def soff_const(step):
        it, rel = divmod(step, 10)
        kh, tap = divmod(rel, 5)
        return it, tap * 262144 + kh * 32768

    def dma_items(step, u):
        fg, h = u >> 1, u & 1
        slot = (4 * step + u) % NRING
        m0 = ("op", "s_add_u32 m0, s%d, %d" % (S_RING, slot * 1024 - fg * 512)) if slot * 1024 - fg * 512 >= 0 else \
             ("op", "s_sub_u32 m0, s%d, %d" % (S_RING, fg * 512 - slot * 1024))
        d = ("vm", "buffer_load_dwordx4 v%d, %s, s%d offen offset:%d lds" % (
            V_WD1 if h else V_WD0, srd(S_W), S_SOFF, fg * 512), ("u", step, u))
        return m0, d

    def tr_items(step, u):
        fg, h = u >> 1, u & 1
        slot = (4 * step + u) % NRING
        ab = AREG + 16 * (step % 2)
        out = [("wvm", ("u", step, u))]
        for a01 in range(2):
            d = ab + 4 * (2 * fg + a01) + 2 * h
            out.append(("lg", "ds_read_b64_tr_b16 %s, v%d offset:%d" % (vr(d, 2), V_A1 if a01 else V_A0, slot * 1024),
                        ("a", step, u, a01)))
        return out

    def ring_fill(st, track=True):
        e("s_mov_b32 s%d, %d" % (S_SOFF, soff_const(st)[1]))
        for u in range(4):
            m0, d = dma_items(st, u)
            em.item(m0)
            e("s_nop 0")
            if track:
                em.item(d)
            else:
                e(d[1])

    LPRE = int(opts.get("lpre", 1))
    XPW = int(opts.get("xpw", 0))
    e("s_lshr_b32 s%d, s2, 3" % S_I)
    e("s_cmp_eq_u32 s%d, 0" % S_ISL)
    e("s_cbranch_scc1 L_hpro")
    for i in range(4):
        for it in xpiece(i):
            em.item(it)
    e("s_cmp_lg_u32 s%d, 4" % S_WAVE)
    e("s_cbranch_scc1 L_ppro")
    for it in xpiece(4):
        em.item(it)
    e("s_branch L_ppro")
    em.label("L_hpro")
    ring_fill(0)
    ring_fill(1)
    em.label("L_ppro")
    pstamp(em, opts, 12)
    e("s_and_b32 s%d, s%d, 3" % (S_T2, S_WAVE))
    SPF = str(opts.get("spf", ""))
    if SPF:
        e("s_and_b32 s%d, s%d, 1" % (S_T0, S_T2))
        e("s_lshl_b32 s%d, s%d, 7" % (S_T0, S_T0))
        e("s_lshr_b32 s%d, s%d, 1" % (S_T1, S_T2))
        e("s_lshl_b32 s%d, s%d, 9" % (S_T1, S_T1))
        e("s_add_u32 s%d, s%d, s%d" % (S_T0, S_T0, S_T1))
        e("s_lshl_b32 s%d, s%d, 8" % (S_T1, S_ISL))
        e("s_add_u32 s%d, s%d, s%d" % (S_T0, S_T0, S_T1))
        e("s_lshl_b32 s%d, s%d, 10" % (S_P0, S_I))
        e("s_add_u32 s%d, s%d, s%d" % (S_P0, S_P0, S_T0))
        e("s_add_u32 s%d, s%d, %d" % (S_P1, S_P0, 229376))
        e("s_add_u32 s%d, s%d, %d" % (S_P2, S_P0, 1048576))
        q0, q1 = [int(v) for v in SPF.split("-")]
        for q in range(q0, q1):
            cs, tap = divmod(q, 5)
            c1 = tap * 262144 + cs * 32768 - q * 1024
            e("s_cmp_ge_u32 s%d, %d" % (S_I, q))
            if tap:
                imm = c1 - 229376
                e("s_cselect_b32 s%d, s%d, s%d" % (S_T0, S_P1, S_P0))
            else:
                imm = c1
                e("s_cselect_b32 s%d, s%d, s%d" % (S_T0, S_P0, S_P2))
            assert imm >= 0
            e("s_buffer_load_dword s%d, %s, s%d offset:%d" % (S_PD, srd(S_W), S_T0, imm))
    pstamp(em, opts, 13)
    e("s_add_u32 s%d, s%d, 1" % (S_T0, S_ISL))
    e("s_mul_i32 s%d, s%d, %d" % (S_T1, S_T0, CHUNK))
    e("s_add_u32 s%d, s%d, s%d" % (S_XM, S_XM, S_T1))
    e("s_lshl_b32 s%d, s%d, 7" % (S_T1, S_T0))
    e("s_add_u32 s%d, s%d, s%d" % (S_XS, S_XS, S_T1))
    e("s_lshl_b32 s%d, s%d, 2" % (S_T1, S_T0))
    e("s_add_u32 s%d, s%d, %d" % (S_T1, S_T1, FLG + F_X))
    e("v_mov_b32 v%d, s%d" % (V_SG, S_T1))
    e("s_mov_b32 s%d, 1" % S_HOOK)
    e("s_cmp_eq_u32 s%d, 0" % S_T2)
    e("s_cselect_b32 s%d, 1, 0" % S_HOOK2)
    XPF = int(opts.get("xpf", 0))
    if XPF:
        e("s_mul_i32 s%d, s%d, %d" % (S_T0, S_T2, 34 * 512))
        e("s_add_u32 s%d, s%d, s%d" % (S_T0, S_T0, S_G0))
        e("s_sub_u32 s%d, s%d, %d" % (S_T0, S_T0, 4096 - 128))
        for k, dst in ((0, V_PFA), (1, V_PFB)):
            e("v_add_u32 v5, %d, v%d" % (64 * k, L))
            e("v_mul_u32_u24 v6, 0x788, v5")
            e("v_lshrrev_b32 v6, 16, v6")
            e("v_mul_u32_u24 v7, 34, v6")
            e("v_sub_u32 v7, v5, v7")
            e("v_lshlrev_b32 v7, 9, v7")
            e("v_lshl_add_u32 v7, v6, 7, v7")
            e("v_add_u32 v7, s%d, v7" % S_T0)
            e("v_max_i32 v7, 0, v7")
            e("v_cmp_gt_u32 vcc, 102, v5")
            e("v_mov_b32 v6, 0x7fffff00")
            e("v_cndmask_b32 v%d, v6, v7, vcc" % dst)

    def xprefetch():
        n = 0
        for v in (V_PFA, V_PFB):
            for hh in range(XPF):
                e("buffer_load_dword v%d, v%d, %s, 0 offen offset:%d" % (V_DUMMY, v, srd(S_X), 64 * hh))
                n += 1
        return n
    e("s_lshl_b32 s%d, s%d, 13" % (S_T0, S_I))
    e("v_lshlrev_b32 v5, 7, v%d" % L)
    e("v_add_u32 v%d, s%d, v5" % (V_PFC, S_T0))
    if int(opts.get("opf", 0)) & 1:
        e("v_and_b32 v5, 3, v%d" % L)
        e("s_lshl_b32 s%d, s%d, 14" % (S_T0, S_T2))
        e("v_lshl_add_u32 v%d, v5, 12, s%d" % (V_PFA, S_T0))
    e("s_mov_b32 s%d, 0x%08x" % (S_C1, f32bits(-2.0 * 1.4426950408889634)))
    e("s_mov_b32 s%d, 0x%08x" % (S_C2, f32bits(-1.4426950408889634)))
    e("s_mov_b32 s%d, 0x%08x" % (S_CL, f32bits(30.0)))
    e("v_lshlrev_b32 v5, 8, v1")
    e("v_lshl_add_u32 v5, v2, 6, v5")
    e("v_lshl_add_u32 v6, v4, 5, v5")
    e("v_lshl_add_u32 v6, v3, 3, v6")
    e("v_add_u32 v%d, s%d, v6" % (V_A0, S_RING))
    e("v_xor_b32 v6, 32, v6")
    e("v_add_u32 v%d, s%d, v6" % (V_A1, S_RING))
    e("s_and_b32 s%d, s%d, 3" % (S_T2, S_WAVE))
    e("s_mul_i32 s%d, s%d, %d" % (S_WOR, S_T2, NWO * 1024))
    e("s_add_u32 s%d, s%d, %d" % (S_WOR, S_WOR, WOB))
    e("v_lshl_add_u32 v6, v3, 4, v5")
    e("v_add_u32 v%d, s%d, v6" % (V_OA, S_WOR))
    e("v_lshrrev_b32 v6, 2, v%d" % L)
    e("v_lshlrev_b32 v6, 9, v6")
    e("v_lshl_add_u32 v6, v3, 4, v6")
    e("s_lshl_b32 s%d, s%d, 7" % (S_T2, S_T2))
    e("v_add_u32 v%d, s%d, v6" % (V_WOD, S_T2))
    e("v_and_b32 v7, 15, v%d" % L)
    e("s_mov_b32 s%d, %d" % (S_T1, PIECE))
    e("v_mul_lo_u32 v5, v7, s%d" % S_T1)
    e("v_lshl_add_u32 v%d, v1, 4, v5" % V_X)
    e("v_lshlrev_b32 v5, 12, v7")
    e("v_lshl_add_u32 v5, v1, 4, v5")
    e("v_add_u32 v%d, s%d, v5" % (V_OUT, S_T2))
    e("v_lshlrev_b32 v5, 4, v%d" % L)
    e("v_add_u32 v%d, %d, v5" % (V_Z, RING0))
    e("v_add_u32 v%d, s%d, v5" % (V_ZW, S_RING))
    e("v_mov_b32 v%d, %d" % (V_FA, FLG))
    e("v_mov_b32 v%d, %d" % (V_FL, FLG + F_X + 4))
    e("v_mov_b32 v%d, 1" % V_ONE)
    e("s_cmp_lg_u32 s%d, 4" % S_WAVE)
    e("s_cbranch_scc1 L_nofl")
    e("v_lshlrev_b32 v5, 2, v%d" % L)
    e("v_add_u32 v5, %d, v5" % FLG)
    e("v_cmp_eq_u32 vcc, 4, v%d" % L)
    e("v_mov_b32 v6, 0")
    e("s_nop 0")
    e("v_cndmask_b32 v6, v6, v%d, vcc" % L)
    e("ds_write_b32 v5, v6")
    em.label("L_nofl")
    for r in range(128):
        e("v_mov_b32 v%d, 0" % (ACC + r))
    e("s_mov_b32 s%d, 0" % S_IT)
    e("s_mov_b32 s%d, 0" % S_CNT)
    pstamp(em, opts, 14)

    def soff_item(step, cur):
        it, c = soff_const(step)
        return ("op", "s_add_u32 s%d, s%d, %d" % (S_SOFF, S_IT, c + (it - cur) * 65536))

    def cold_a():
        em.item(soff_item(2, 0))
        for u in range(4):
            for it in tr_items(0, u):
                em.item(it)
        for u in range(4):
            m0, d = dma_items(2, u)
            em.item(m0)
            em.wait_lg(("a", 0, u, 1))
            e("s_nop 0")
            em.item(d)

    e("s_setprio 3")
    e("s_cmp_eq_u32 s%d, 0" % S_ISL)
    e("s_cbranch_scc1 L_hw")
    for st in range(LPRE):
        ring_fill(st, False)
    npf = xprefetch() if XPW == 0 else 0
    e("s_waitcnt vmcnt(%d) lgkmcnt(0)" % (4 * LPRE + npf))
    e("s_barrier")
    for st in range(LPRE, 2):
        ring_fill(st, False)
    if XPW == 1:
        xprefetch()
    sv = (list(em.vm), list(em.lg))
    cold_a()
    em.vm, em.lg = sv
    if XPW == 2:
        xprefetch()
    e("s_branch L_bar")
    em.label("L_hw")
    cold_a()
    pstamp(em, opts, 15)
    e("s_barrier")
    em.label("L_bar")
    stamp(em, opts, 3)
    pcollect(em, opts)

    slotkey = [None] * 8

    def bkey(step, j):
        cs, tap = divmod(step, 5)
        sidx = j - 2 * tap + 8
        return sidx & 7, (cs, sidx)

    def bread(step, j):
        slot, key = bkey(step, j)
        if slotkey[slot] == key:
            return None
        slotkey[slot] = key
        cs, tap = divmod(step, 5)
        sidx = j - 2 * tap + 8
        off = (sidx >> 3) * PIECE + (sidx & 7) * 128 + (cs & 1) * 64
        return ("lg", "ds_read_b128 %s, v%d offset:%d" % (vr(BREG + 4 * slot, 4), V_X, off), ("b", key))

    for j in range(7, -1, -1):
        em.item(bread(0, j))
    if int(opts.get("order", 0)) in (0, 2):
        e("s_waitcnt lgkmcnt(6)")
        em.lg = em.lg[-6:]
    else:
        e("s_waitcnt lgkmcnt(0)")
        em.lg = []
    stamp(em, opts, 4)

    def hook(items, lab):
        return [("op", "s_cmp_eq_u32 s%d, 0" % S_HOOK), ("op", "s_cbranch_scc1 %s" % lab)] + items + [("lab", lab)]

    def signal(c):
        return [("op", "ds_add_u32 v%d, v%d offset:%d" % (V_FA, V_ONE, F_X + 4 * c))]

    def gstep(step):
        rel = step % 10
        cur = step // 10
        ab = AREG + 16 * (step % 2)
        gaps = [[] for _ in range(33)]
        gaps[0].append(soff_item(step + 3, cur))
        if rel == 7:
            gaps[0].append(("op", "s_cmp_eq_u32 s%d, 3" % S_CNT))
            gaps[0].append(("op", "s_cselect_b32 s%d, 0, s%d" % (S_W + 2, S_W + 2)))
        for u in range(4):
            for it in tr_items(step + 1, u):
                gaps[GR[u]].append(it)
            m0, d = dma_items(step + 3, u)
            gaps[GD[u] - 1].append(m0)
            gaps[GD[u]].append(("wlg", ("a", step + 1, u, 1)))
            gaps[GD[u]].append(d)
        sig = [("op", "s_mov_b64 exec, 1"),
               ("op", "ds_add_u32 v%d, v%d" % (V_SG, V_ONE)),
               ("op", "s_mov_b64 exec, -1")]
        for i in range(5):
            if XR[i] == rel and not opts.get("nox"):
                lab = "L_hx%d" % i
                gaps[XG[i]] += [("op", "s_cmp_eq_u32 s%d, 0" % (S_HOOK2 if i == 4 else S_HOOK)), ("op", "s_cbranch_scc1 %s" % lab)] + xpiece(i) + [("lab", lab)]
        if rel == RS:
            gaps[2] += hook(sig, "L_hsig")
        if rel == 8:
            gaps[10].append(("lg", "ds_read_b32 v%d, v%d" % (V_F, V_FL), ("fl", step)))
        pre = []
        if rel == 9:
            pre = [("wlg", ("fl", step - 1)),
                   ("op", "v_readfirstlane_b32 s%d, v%d" % (S_T0, V_F)),
                   ("op", "v_add_u32 v%d, %d, v%d" % (V_X, CHUNK, V_X)),
                   ("op", "s_cmp_eq_u32 s%d, 4" % S_T0),
                   ("op", "s_cbranch_scc1 L_pok"),
                   ("lab", "L_pspin"),
                   ("op", "ds_read_b32 v%d, v%d" % (V_F, V_FL)),
                   ("op", "s_waitcnt lgkmcnt(0)"),
                   ("op", "v_readfirstlane_b32 s%d, v%d" % (S_T0, V_F)),
                   ("op", "s_cmp_eq_u32 s%d, 4" % S_T0),
                   ("op", "s_cbranch_scc0 L_pspin"),
                   ("lab", "L_pok"),
                   ("op", "v_add_u32 v%d, 4, v%d" % (V_FL, V_FL))]
        for it in pre:
            em.item(it)
        nxt = step + 1
        pending = {}
        for j2 in range(8):
            slot, key = bkey(nxt, j2)
            pending[slot] = j2
        k = 0
        ORD = int(opts.get("order", 0))
        if ORD == 0:
            seq = [(j, a) for j in range(7, -1, -1) for a in range(4)]
        elif ORD == 1:
            seq = [(j, a) for a in range(4) for j in range(7, -1, -1)]
        elif ORD == 2:
            seq = [(j, (a if (j & 1) else 3 - a)) for j in range(7, -1, -1) for a in range(4)]
        elif ORD == 3:
            seq = [(j, 2 * ah + a) for ah in range(2) for j in range(7, -1, -1) for a in range(2)]
        last = {}
        for idx, (j, a) in enumerate(seq):
            last[j] = idx
        for idx, (j, a) in enumerate(seq):
            slot, key = bkey(step, j)
            em.wait_lg(("b", key))
            em.wait_lg(("a", step, 2 * (a >> 1) + 1, a & 1))
            em.e("v_mfma_f32_16x16x32_bf16 %s, %s, %s, %s" % (
                vr(acc(a, j), 4), vr(ab + 4 * a, 4), vr(BREG + 4 * slot, 4), vr(acc(a, j), 4)))
            if last[j] == idx and slot in pending:
                it = bread(nxt, pending[slot])
                if it:
                    em.item(it)
            for it in gaps[k]:
                em.item(it)
            k += 1

    start = len(em.lines)
    for s in range(0, 10):
        gstep(s)
    mid = len(em.lines)
    for s in range(10, 20):
        gstep(s)
    end = len(em.lines)
    b1 = em.lines[start:mid]
    b2 = em.lines[mid:end]
    if b1 != b2:
        import difflib
        for l in difflib.unified_diff(b1, b2, lineterm="", n=0):
            print("DIFF", l)
    b1 = b2
    em.lines = em.lines[:start]
    if opts.get("nodma"):
        b1 = [l for l in b1 if not ("s[16:19]" in l) and "vmcnt" not in l]
    if opts.get("nomfma"):
        b1 = [l for l in b1 if "v_mfma" not in l]
    em.label("L_loop")
    em.lines += b1
    if opts.get("stamp") == 2:
        e("s_memtime s[80:81]")
        e("s_mov_b32 s71, s72")
        e("s_mov_b32 s72, s73")
        e("s_mov_b32 s73, s74")
        e("s_waitcnt lgkmcnt(0)")
        e("s_mov_b32 s74, s80")
    e("s_add_u32 s%d, s%d, 65536" % (S_IT, S_IT))
    e("s_add_u32 s%d, s%d, 1" % (S_CNT, S_CNT))
    e("s_add_u32 s%d, s%d, %d" % (S_XM, S_XM, CHUNK))
    e("s_add_u32 s%d, s%d, 128" % (S_XS, S_XS))
    e("v_add_u32 v%d, 4, v%d" % (V_SG, V_SG))
    e("s_cmp_gt_u32 s%d, s%d" % (S_CNT, S_ISL))
    e("s_cselect_b32 s%d, 0, s%d" % (S_HOOK, S_HOOK))
    e("s_cselect_b32 s%d, 0, s%d" % (S_HOOK2, S_HOOK2))
    e("s_mul_i32 s%d, s%d, %d" % (S_T0, S_ISL, XL - 1))
    e("s_add_u32 s%d, s%d, 1" % (S_T0, S_T0))
    e("s_cmp_lg_u32 s%d, s%d" % (S_T0, S_CNT))
    e("s_cbranch_scc1 L_nsp")
    e("s_setprio 1")
    e("s_cmp_lg_u32 s%d, 0" % S_ISL)
    e("s_cbranch_scc1 L_nsp")
    e("s_setprio 2")
    OPF = int(opts.get("opf", 0))
    if OPF & 1:
        e("buffer_load_dword v%d, v%d, %s, s%d offen" % (V_DUMMY, V_PFA, srd(S_OUT), S_G0))
    if OPF & 2:
        e("s_cmp_lg_u32 s%d, 0" % S_WAVE)
        e("s_cbranch_scc1 L_nsp")
        e("buffer_load_dword v%d, v%d, %s, 0 offen" % (V_DUMMY, V_PFC, srd(S_WO)))
    em.label("L_nsp")
    e("s_cmp_lt_u32 s%d, 4" % S_CNT)
    e("s_cbranch_scc1 L_loop")
    e("s_waitcnt lgkmcnt(0)")
    em.lg = []
    stamp(em, opts, 5)
    e("s_cmp_lg_u32 s%d, 0" % S_ISL)
    e("s_cbranch_scc1 L_low")
    vm_after_loop = list(em.vm)

    e("s_setprio 0")

    def wo_dma(U):
        ks, u = divmod(U, 4)
        ch, h = u >> 1, u & 1
        slot = U % NWO
        off = slot * 1024 - ch * 64
        m0 = ("op", "s_add_u32 m0, s%d, %d" % (S_WOR, off)) if off >= 0 else ("op", "s_sub_u32 m0, s%d, %d" % (S_WOR, -off))
        so = ("op", "s_mov_b32 s%d, %d" % (S_SOFF, (32 * ks + 16 * h) * 512))
        d = ("vm", "buffer_load_dwordx4 v%d, %s, s%d offen offset:%d lds" % (V_WOD, srd(S_WO), S_SOFF, ch * 64), ("o", U))
        return [m0, so, d]

    def wo_tr(U):
        ks, u = divmod(U, 4)
        ch, h = u >> 1, u & 1
        slot = U % NWO
        ab = AREG + 16 * (ks % 4)
        out = [("wvm", ("o", U))]
        for a1 in range(2):
            d = ab + 4 * (2 * ch + a1) + 2 * h
            out.append(("lg", "ds_read_b64_tr_b16 %s, v%d offset:%d" % (vr(d, 2), V_OA, slot * 1024 + a1 * 8), ("oa", U, a1)))
        return out

    for U in range(NWO):
        for it in wo_dma(U):
            em.item(it)
    nextdma = NWO
    for t, j in enumerate(range(7, -1, -1)):
        zreg = BREG + 16 + 4 * (t % 4)
        gate_tile(em, j, zreg)
        if t == 0:
            em.wait_vm(vm_after_loop[-1])
        em.lgop("ds_write_b128 v%d, %s offset:%d" % (V_ZW, vr(zreg, 4), j * 1024), ("zw", j))
        if t >= 1:
            em.wait_lg(("oa", 2 * t - 1, 1))
            for U in (nextdma, nextdma + 1):
                for it in wo_dma(U):
                    em.item(it)
            nextdma += 2
        for U in (2 * t, 2 * t + 1):
            for it in wo_tr(U):
                em.item(it)
    e("s_mov_b64 exec, 1")
    em.lgop("ds_add_u32 v%d, v%d offset:%d" % (V_FA, V_ONE, F_ZH), ("zf",))
    e("s_mov_b64 exec, -1")
    em.wait_lg(("oa", 15, 1))
    for U in (nextdma, nextdma + 1):
        for it in wo_dma(U):
            em.item(it)
    nextdma += 2
    stamp(em, opts, 6)
    em.label("L_zhs")
    e("ds_read_b32 v%d, v%d offset:%d" % (V_F, V_FA, F_ZH))
    e("s_waitcnt lgkmcnt(0)")
    em.lg = []
    e("v_readfirstlane_b32 s%d, v%d" % (S_T0, V_F))
    e("s_cmp_eq_u32 s%d, 4" % S_T0)
    e("s_cbranch_scc0 L_zhs")
    if opts.get("hp2"):
        e("s_setprio 2")
    stamp(em, opts, 7)

    def zread(ks, j, slot):
        return ("lg", "ds_read_b128 %s, v%d offset:%d" % (vr(BREG + 4 * slot, 4), V_Z, ks * 8192 + j * 1024), ("z", ks, j))

    for j in range(7, -1, -1):
        em.item(zread(0, j, j))
    for ks in range(4):
        ab = AREG + 16 * ks
        gaps = [[] for _ in range(33)]
        if ks >= 1:
            for u in range(4):
                U = 4 * (ks + 3) + u
                for it in wo_tr(U):
                    gaps[8 * u].append(it)
                if nextdma < 32:
                    gaps[8 * u + 6].append(("wlg", ("oa", U, 1)))
                    for it in wo_dma(nextdma):
                        gaps[8 * u + 6].append(it)
                    nextdma += 1
        k = 0
        for j in range(7, -1, -1):
            em.wait_lg(("z", ks, j))
            for a in range(4):
                c = "0" if ks == 0 else vr(acc(a, j), 4)
                e("v_mfma_f32_16x16x32_bf16 %s, %s, %s, %s" % (vr(acc(a, j), 4), vr(ab + 4 * a, 4), vr(BREG + 4 * j, 4), c))
                if a == 3 and ks < 3:
                    em.item(zread(ks + 1, j, j))
                for it in gaps[k]:
                    em.item(it)
                k += 1
    assert nextdma == 32, nextdma
    for u in range(4):
        for it in wo_tr(28 + u):
            em.item(it)
    stamp(em, opts, 8)

    def epi(j, t):
        for ch in range(2):
            tt = V_DUMMY + 4 * ((2 * t + ch) % 4) if False else BREG + 0
            tt = 240 + 4 * ((2 * t + ch) % 4)
            for a1 in range(2):
                aa = acc(2 * ch + a1, j)
                e("v_cvt_pk_bf16_f32 v%d, v%d, v%d" % (tt + 2 * a1, aa, aa + 1))
                e("v_cvt_pk_bf16_f32 v%d, v%d, v%d" % (tt + 2 * a1 + 1, aa + 2, aa + 3))
            e("buffer_store_dwordx4 %s, v%d, %s, s%d offen offset:%d %s" % (
                vr(tt, 4), V_OUT, srd(S_OUT), S_G0, j * 512 + ch * 64, str(opts.get("sf", "")).replace("+", " ")))

    ROT = int(opts.get("rot", 0))

    def rot_entry(pref):
        e("s_lshr_b32 s%d, s2, %d" % (S_T3, int(opts.get("rsh", 3))))
        e("s_and_b32 s%d, s%d, 7" % (S_T3, S_T3))
        e("s_mov_b32 s%d, 0" % S_CNT)
        for r in range(1, 8):
            e("s_cmp_eq_u32 s%d, %d" % (S_T3, r))
            e("s_cbranch_scc1 %s%d" % (pref, 7 - r))

    def rot_end(pref, j, done):
        e("s_add_u32 s%d, s%d, 1" % (S_CNT, S_CNT))
        e("s_cmp_eq_u32 s%d, 8" % S_CNT)
        if j == 0:
            e("s_cbranch_scc0 %s7" % pref)
        else:
            e("s_cbranch_scc1 %s" % done)

    if ROT:
        rot_entry("L_zl")
    for t, j in enumerate(range(7, -1, -1)):
        sb = 4 * (t % 2)
        em.label("L_zl%d" % j)
        e("ds_read_b32 v%d, v%d offset:%d" % (V_F, V_FA, F_ZL + 4 * j))
        for k4 in range(4):
            e(zread(4 + k4, j, sb + k4)[1])
        e("s_waitcnt lgkmcnt(0)")
        em.lg = []
        e("v_readfirstlane_b32 s%d, v%d" % (S_T0, V_F))
        e("s_cmp_eq_u32 s%d, 4" % S_T0)
        e("s_cbranch_scc0 L_zl%d" % j)
        for k4 in range(4):
            ab = AREG + 16 * k4
            for a in range(4):
                e("v_mfma_f32_16x16x32_bf16 %s, %s, %s, %s" % (vr(acc(a, j), 4), vr(ab + 4 * a, 4), vr(BREG + 4 * (sb + k4), 4), vr(acc(a, j), 4)))
        e("s_nop 7")
        epi(j, t)
        if ROT:
            rot_end("L_zl", j, "L_zdone")
    em.label("L_zdone")
    stamp(em, opts, 9)
    if opts.get("stamp"):
        e("s_waitcnt vmcnt(0)")
    stamp(em, opts, 10)
    stamp_out(em, opts)
    e("s_endpgm")

    em.label("L_low")
    em.vm = []
    em.lg = []
    e("s_setprio 3")
    if ROT:
        e("s_waitcnt vmcnt(0)")
        rot_entry("L_gl")
    for t, j in enumerate(range(7, -1, -1)):
        zreg = BREG + 16 + 4 * (t % 4)
        em.label("L_gl%d" % j)
        gate_tile(em, j, zreg)
        if t == 0 and not ROT:
            e("s_waitcnt vmcnt(0)")
        e("ds_write_b128 v%d, %s offset:%d" % (V_ZW, vr(zreg, 4), j * 1024))
        e("s_mov_b64 exec, 1")
        e("ds_add_u32 v%d, v%d offset:%d" % (V_FA, V_ONE, F_ZL + 4 * j))
        e("s_mov_b64 exec, -1")
        if ROT:
            rot_end("L_gl", j, "L_gdone")
    em.label("L_gdone")
    e("s_waitcnt lgkmcnt(0)")
    stamp(em, opts, 6)
    stamp_out(em, opts)
    em.label("L_end")
    e("s_endpgm")

    txt = HEADER % (LDS_TOTAL, NAME, NAME, NAME) + "\n".join(em.lines) + FOOTER % NAME
    return txt


if __name__ == "__main__":
    out = sys.argv[1] if len(sys.argv) > 1 else "cdna_kernels/%s.s" % NAME
    opts = {}
    for a in sys.argv[2:]:
        k, v = a.split("=")
        opts[k] = int(v) if v.isdigit() else v
    open(out, "w").write(build(opts))
    print("wrote", out)
```

```python
import sys
NAME = "standalone__autoregressive_conv_wavenet__speech"
HEADER = """; @launch grid=(250,1,1) block=(512,1,1) lds=%d
.amdgcn_target "amdgcn-amd-amdhsa--gfx950"
.text
.globl %s_kernel
.p2align 8
.type %s_kernel,@function
%s_kernel:
"""
FOOTER = """
.section .rodata,"a"
.p2align 6
.amdhsa_kernel %s_kernel
  .amdhsa_next_free_vgpr 256
  .amdhsa_next_free_sgpr 102
  .amdhsa_accum_offset 256
  .amdhsa_group_segment_fixed_size 0
  .amdhsa_kernarg_size 48
  .amdhsa_user_sgpr_count 2
  .amdhsa_user_sgpr_kernarg_segment_ptr 1
  .amdhsa_system_sgpr_workgroup_id_x 1
.end_amdhsa_kernel
"""

def build(o):
    L = []
    e = lambda s: L.append("    " + s)
    nw = int(o.get("nw", 4)); pat = o.get("pat", "p0"); sf = o.get("sf", "sc1").replace("+", " ")
    if sf == "none": sf = ""
    rot = int(o.get("rot", 1)); gap = int(o.get("gap", 0))
    def stamp(k, real=False):
        e("%s s[50:51]" % ("s_memrealtime" if real else "s_memtime"))
        e("s_waitcnt lgkmcnt(0)")
        e("s_mov_b32 s%d, s50" % (60 + k))
    e("s_cmp_ge_u32 s2, 250")
    e("s_cbranch_scc1 L_end")
    e("s_load_dwordx2 s[4:5], s[0:1], 24")
    e("s_load_dwordx2 s[46:47], s[0:1], 40")
    for k in range(16):
        e("s_mov_b32 s%d, 0" % (60 + k))
    e("v_and_b32 v0, 0x3ff, v0")
    e("v_lshrrev_b32 v1, 6, v0")
    e("v_and_b32 v2, 63, v0")
    e("v_readfirstlane_b32 s28, v1")
    e("s_waitcnt lgkmcnt(0)")
    e("s_mov_b32 s16, s4"); e("s_mov_b32 s17, s5"); e("s_mov_b32 s18, 16384000"); e("s_mov_b32 s19, 0x00020000")
    e("s_lshl_b32 s40, s2, 16")
    for r in range(8):
        e("v_mov_b32 v%d, v0" % (8 + r))
    e("s_memrealtime s[50:51]")
    e("s_waitcnt lgkmcnt(0)")
    e("s_add_u32 s52, s50, 1024")
    e("s_lshr_b32 s52, s52, 11")
    e("s_add_u32 s52, s52, 1")
    e("s_lshl_b32 s52, s52, 11")
    L.append("L_spin:")
    e("s_memrealtime s[50:51]")
    e("s_waitcnt lgkmcnt(0)")
    e("s_sub_u32 s53, s50, s52")
    e("s_cmp_lt_i32 s53, 0")
    e("s_cbranch_scc1 L_spin")
    stamp(0, True); stamp(2)
    e("s_cmp_ge_u32 s28, %d" % nw)
    e("s_cbranch_scc1 L_fin")
    nst = 64 // nw
    e("v_and_b32 v4, 15, v2")
    e("v_lshrrev_b32 v5, 4, v2")
    if pat == "p0":
        e("v_lshlrev_b32 v3, 12, v4")
        e("v_lshl_add_u32 v3, v5, 4, v3")
        if nw == 4:
            e("s_lshl_b32 s30, s28, 7")
            offs = [(s >> 1) * 512 + (s & 1) * 64 for s in range(16)]
            unit = 2
        else:
            e("s_lshl_b32 s30, s28, 6")
            offs = [s * 512 for s in range(8)]
            unit = 1
        e("v_add_u32 v3, s30, v3")
        rstride = 512
    elif pat == "p1":
        e("v_lshlrev_b32 v3, 4, v2")
        e("s_lshl_b32 s30, s28, 10")
        e("v_add_u32 v3, s30, v3")
        offs = [s * nw * 1024 for s in range(nst)]
        unit = nst // 8
        rstride = unit * nw * 1024
    elif pat == "p2":
        e("v_lshrrev_b32 v3, 3, v2")
        e("v_lshlrev_b32 v3, 12, v3")
        e("v_and_b32 v6, 7, v2")
        e("v_lshl_add_u32 v3, v6, 4, v3")
        assert nw == 4
        e("s_lshl_b32 s30, s28, 7")
        e("v_add_u32 v3, s30, v3")
        offs = [(s >> 1) * 512 + (s & 1) * 32768 for s in range(16)]
        unit = 2
        rstride = 512
    elif pat == "p3":
        e("v_lshrrev_b32 v3, 5, v2")
        e("v_lshlrev_b32 v3, 12, v3")
        e("v_and_b32 v6, 31, v2")
        e("v_lshl_add_u32 v3, v6, 4, v3")
        assert nw == 4
        e("s_lshl_b32 s30, s28, 14")
        e("v_add_u32 v3, s30, v3")
        offs = [(s >> 1) * 512 + (s & 1) * 8192 for s in range(16)]
        unit = 2
        rstride = 512
    elif pat == "p4":
        e("v_and_b32 v4, 15, v2")
        e("v_lshlrev_b32 v3, 12, v4")
        e("v_bfe_u32 v6, v2, 4, 1")
        e("v_lshl_add_u32 v3, v6, 9, v3")
        e("v_lshrrev_b32 v6, 5, v2")
        e("v_lshl_add_u32 v3, v6, 4, v3")
        assert nw == 4
        e("s_lshl_b32 s30, s28, 7")
        e("v_add_u32 v3, s30, v3")
        offs = [(s >> 2) * 1024 + (s & 3) * 32 for s in range(16)]
        unit = 4
        rstride = 1024
    ngrp = nst // unit
    if rot:
        e("s_lshr_b32 s31, s2, 3")
    else:
        e("s_mov_b32 s31, 0")
    for t in range(ngrp):
        e("s_add_u32 s32, s31, %d" % t)
        e("s_and_b32 s32, s32, %d" % (ngrp - 1))
        e("s_mul_i32 s32, s32, %d" % rstride)
        e("s_add_u32 s32, s32, s40")
        for u in range(unit):
            off = offs[u]
            if off >= 4096:
                e("s_add_u32 s33, s32, %d" % off)
                e("buffer_store_dwordx4 v[8:11], v3, s[16:19], s33 offen %s" % sf)
            else:
                e("buffer_store_dwordx4 v[8:11], v3, s[16:19], s32 offen offset:%d %s" % (off, sf))
        for g in range(gap):
            e("s_nop 15")
        if t == 0 or t == ngrp // 2:
            stamp(3 if t == 0 else 4)
    stamp(5)
    e("s_waitcnt vmcnt(0)")
    stamp(6)
    L.append("L_fin:")
    stamp(1, True)
    e("s_mov_b32 s52, s46"); e("s_mov_b32 s53, s47"); e("s_mov_b32 s54, 0x100000"); e("s_mov_b32 s55, 0x00020000")
    e("s_lshl_b32 s50, s2, 3"); e("s_add_u32 s50, s50, s28"); e("s_lshl_b32 s50, s50, 6")
    e("s_mov_b64 exec, 1")
    e("v_mov_b32 v250, 0")
    for k in range(16):
        e("v_mov_b32 v251, s%d" % (60 + k))
        e("buffer_store_dword v251, v250, s[52:55], s50 offen offset:%d" % (4 * k))
    L.append("L_end:")
    e("s_endpgm")
    return HEADER % (160 * 1024, NAME, NAME, NAME) + "\n".join(L) + FOOTER % NAME

if __name__ == "__main__":
    out = sys.argv[1]
    o = {}
    for a in sys.argv[2:]:
        k, v = a.split("=")
        o[k] = v
    open(out, "w").write(build(o))
```

```python
import sys
sys.path.insert(0, "gen")
from mbst import HEADER, FOOTER, NAME

def gate(e, j, fma=True, pk=False):
    T = 128
    for a01 in range(2):
        f = (j * 4 + a01) * 4
        g = (j * 4 + 2 + a01) * 4
        t1 = [T + 0 + r for r in range(4)]
        t2 = [T + 4 + r for r in range(4)]
        d1 = [T + 8 + r for r in range(4)]
        zz = [T + 12 + r for r in range(4)]
        if pk:
            for r in (0, 2):
                e("v_pk_mul_f32 v[%d:%d], s[42:43], v[%d:%d]" % (t1[r], t1[r] + 1, f + r, f + r + 1))
            for r in (0, 2):
                e("v_pk_mul_f32 v[%d:%d], s[44:45], v[%d:%d]" % (t2[r], t2[r] + 1, g + r, g + r + 1))
        else:
            for r in range(4):
                e("v_mul_f32 v%d, s42, v%d" % (t1[r], f + r))
            for r in range(4):
                e("v_mul_f32 v%d, s44, v%d" % (t2[r], g + r))
        for r in range(4):
            e("v_min_f32 v%d, s48, v%d" % (t1[r], t1[r]))
        for r in range(4):
            e("v_exp_f32 v%d, v%d" % (t2[r], t2[r]))
        for r in range(4):
            e("v_exp_f32 v%d, v%d" % (t1[r], t1[r]))
        e("s_nop 0")
        if pk:
            for r in (0, 2):
                e("v_pk_add_f32 v[%d:%d], v[%d:%d], 1.0 op_sel_hi:[1,0]" % (d1[r], d1[r] + 1, t1[r], t1[r] + 1))
            for r in (0, 2):
                e("v_pk_fma_f32 v[%d:%d], v[%d:%d], v[%d:%d], v[%d:%d]" % (d1[r], d1[r] + 1, d1[r], d1[r] + 1, t2[r], t2[r] + 1, d1[r], d1[r] + 1))
        else:
            for r in range(4):
                e("v_add_f32 v%d, 1.0, v%d" % (d1[r], t1[r]))
            for r in range(4):
                e("v_fma_f32 v%d, v%d, v%d, v%d" % (d1[r], d1[r], t2[r], d1[r]))
        for r in range(4):
            e("v_rcp_f32 v%d, v%d" % (d1[r], d1[r]))
        e("s_nop 0")
        if pk:
            for r in (0, 2):
                e("v_pk_fma_f32 v[%d:%d], v[%d:%d], v[%d:%d], v[%d:%d] neg_lo:[1,0,0] neg_hi:[1,0,0]" % (zz[r], zz[r] + 1, t1[r], t1[r] + 1, d1[r], d1[r] + 1, d1[r], d1[r] + 1))
        else:
            for r in range(4):
                e("v_fma_f32 v%d, -v%d, v%d, v%d" % (zz[r], t1[r], d1[r], d1[r]))
        e("v_cvt_pk_bf16_f32 v%d, v%d, v%d" % (144 + 2 * a01, zz[0], zz[1]))
        e("v_cvt_pk_bf16_f32 v%d, v%d, v%d" % (144 + 2 * a01 + 1, zz[2], zz[3]))

def build(o):
    L = []
    e = lambda s: L.append("    " + s)
    hj = o.get("h", "idle"); lj = o.get("l", "g8"); hp = int(o.get("hp", 0)); lp = int(o.get("lp", 3)); pk = int(o.get("pk", 0))
    def stamp(k, real=False):
        e("%s s[50:51]" % ("s_memrealtime" if real else "s_memtime"))
        e("s_waitcnt lgkmcnt(0)")
        e("s_mov_b32 s%d, s50" % (60 + k))
    e("s_cmp_ge_u32 s2, 250")
    e("s_cbranch_scc1 L_end")
    e("s_load_dwordx2 s[46:47], s[0:1], 40")
    for k in range(16):
        e("s_mov_b32 s%d, 0" % (60 + k))
    e("v_and_b32 v0, 0x3ff, v0")
    e("v_lshrrev_b32 v1, 6, v0")
    e("v_cvt_f32_u32 v2, v0")
    e("v_readfirstlane_b32 s28, v1")
    e("v_mul_f32 v2, 0x3a83126f, v2")
    for r in range(3, 224):
        e("v_mov_b32 v%d, v2" % r)
    e("s_mov_b32 s42, 0xc038aa3b"); e("s_mov_b32 s43, 0xc038aa3b")
    e("s_mov_b32 s44, 0xbfb8aa3b"); e("s_mov_b32 s45, 0xbfb8aa3b")
    e("s_mov_b32 s48, 0x41f00000")
    e("s_waitcnt lgkmcnt(0)")
    def job(jb):
        if jb == "idle":
            return
        if jb[0] == "g":
            for j in range(int(jb[1:])):
                gate(e, j % 8, pk=pk)
        elif jb[0] == "m":
            for i in range(int(jb[1:])):
                a = (i % 8) * 4
                e("v_mfma_f32_16x16x32_bf16 v[%d:%d], v[160:163], v[164:167], v[%d:%d]" % (a, a + 3, a, a + 3))
        elif jb[0] == "M":
            for i in range(int(jb[1:])):
                a = (i % 2) * 16
                e("v_mfma_f32_32x32x16_bf16 v[%d:%d], v[160:163], v[164:167], v[%d:%d]" % (a, a + 15, a, a + 15))
    e("s_mov_b32 s33, 0")
    L.append("L_rep:")
    e("s_barrier")
    stamp(0, True); stamp(2)
    e("s_cmp_ge_u32 s28, 4")
    e("s_cbranch_scc1 L_l")
    e("s_setprio %d" % hp)
    job(hj)
    e("s_branch L_j")
    L.append("L_l:")
    e("s_setprio %d" % lp)
    job(lj)
    L.append("L_j:")
    stamp(3)
    e("s_mov_b32 s66, s65")
    e("s_mov_b32 s65, s64")
    e("s_sub_u32 s64, s63, s62")
    e("s_add_u32 s33, s33, 1")
    e("s_cmp_lt_u32 s33, 3")
    e("s_cbranch_scc1 L_rep")
    for k in (64, 65, 66):
        e("s_add_u32 s%d, s%d, s62" % (k, k))
    stamp(1, True)
    e("s_mov_b32 s52, s46"); e("s_mov_b32 s53, s47"); e("s_mov_b32 s54, 0x100000"); e("s_mov_b32 s55, 0x00020000")
    e("s_lshl_b32 s50, s2, 3"); e("s_add_u32 s50, s50, s28"); e("s_lshl_b32 s50, s50, 6")
    e("s_mov_b64 exec, 1")
    e("v_mov_b32 v250, 0")
    for k in range(16):
        e("v_mov_b32 v251, s%d" % (60 + k))
        e("buffer_store_dword v251, v250, s[52:55], s50 offen offset:%d" % (4 * k))
    L.append("L_end:")
    e("s_endpgm")
    return HEADER % (64 * 1024, NAME, NAME, NAME) + "\n".join(L) + FOOTER % NAME

if __name__ == "__main__":
    out = sys.argv[1]
    o = {}
    for a in sys.argv[2:]:
        k, v = a.split("=")
        o[k] = v
    open(out, "w").write(build(o))
```

```python
import sys
sys.path.insert(0, "gen")
from mbst import HEADER, FOOTER, NAME

def build(o):
    L = []
    e = lambda s: L.append("    " + s)
    k = float(o.get("k", 0)); ty = o.get("t", "add"); sh = o.get("sh", "16"); nm = int(o.get("n", 256)); only = int(o.get("only", 0))
    def stamp(kk, real=False):
        e("%s s[50:51]" % ("s_memrealtime" if real else "s_memtime"))
        e("s_waitcnt lgkmcnt(0)")
        e("s_mov_b32 s%d, s50" % (60 + kk))
    e("s_cmp_ge_u32 s2, 250")
    e("s_cbranch_scc1 L_end")
    e("s_load_dwordx2 s[46:47], s[0:1], 40")
    for kk in range(16):
        e("s_mov_b32 s%d, 0" % (60 + kk))
    e("v_and_b32 v0, 0x3ff, v0")
    e("v_lshrrev_b32 v1, 6, v0")
    e("v_cvt_f32_u32 v2, v0")
    e("v_readfirstlane_b32 s28, v1")
    e("v_mul_f32 v2, 0x3a83126f, v2")
    for r in range(3, 250):
        e("v_mov_b32 v%d, v2" % r)
    e("s_mov_b32 s42, 0xffff0000"); e("s_mov_b32 s43, 0x3f80")
    e("s_waitcnt lgkmcnt(0)")
    e("s_mov_b32 s33, 0")
    L.append("L_rep:")
    e("s_barrier")
    stamp(0, True); stamp(2)
    if only:
        e("s_cmp_ge_u32 s28, 4")
        e("s_cbranch_scc1 L_j")
    acc = 0.0
    cnt = 0
    sp = int(o.get("sp", 0)); cl = int(o.get("cl", 0)); ki = float(o.get("ki", 2))
    for i in range(nm):
        if sp == 1 or (cl and i % cl == 0):
            e("s_setprio 1")
        if sh == "16":
            a = (i % 32) * 4
            e("v_mfma_f32_16x16x32_bf16 v[%d:%d], v[160:163], v[164:167], v[%d:%d]" % (a, a + 3, a, a + 3))
        elif sh == "32":
            a = (i % 8) * 16
            e("v_mfma_f32_32x32x16_bf16 v[%d:%d], v[160:163], v[164:167], v[%d:%d]" % (a, a + 15, a, a + 15))
        if cl:
            acc += ki
            if i % cl == cl - 1:
                acc += cl * (k - ki)
                e("s_setprio 0")
        else:
            acc += k
        if sp == 1:
            e("s_setprio 0")
        while acc >= 1.0:
            acc -= 1.0
            d = 176 + (cnt % 32)
            s = 210 + (cnt % 16)
            t = ty
            if ty == "mix":
                t = ["lshl", "and", "add", "add", "add", "cvt", "lshl"][cnt % 7]
            if t == "add":
                e("v_add_f32 v%d, v%d, v%d" % (d, s, s + 1))
            elif t == "lshl":
                e("v_lshlrev_b32 v%d, 16, v%d" % (d, s))
            elif t == "and":
                e("v_and_b32 v%d, s42, v%d" % (d, s))
            elif t == "cvt":
                e("v_cvt_pk_bf16_f32 v%d, v%d, v%d" % (d, s, s + 1))
            elif t == "dot":
                e("v_dot2_f32_bf16 v%d, v%d, s43, v%d" % (d, s, s + 1))
            elif t == "pk":
                d2 = 176 + 2 * (cnt % 16)
                s2 = 210 + 2 * (cnt % 8)
                e("v_pk_add_f32 v[%d:%d], v[%d:%d], v[%d:%d]" % (d2, d2 + 1, s2, s2 + 1, s2 + 2, s2 + 3))
            cnt += 1
    L.append("L_j:")
    stamp(3)
    e("s_mov_b32 s66, s65")
    e("s_mov_b32 s65, s64")
    e("s_sub_u32 s64, s63, s62")
    e("s_add_u32 s33, s33, 1")
    e("s_cmp_lt_u32 s33, 3")
    e("s_cbranch_scc1 L_rep")
    for kk in (64, 65, 66):
        e("s_add_u32 s%d, s%d, s62" % (kk, kk))
    stamp(1, True)
    e("s_mov_b32 s52, s46"); e("s_mov_b32 s53, s47"); e("s_mov_b32 s54, 0x100000"); e("s_mov_b32 s55, 0x00020000")
    e("s_lshl_b32 s50, s2, 3"); e("s_add_u32 s50, s50, s28"); e("s_lshl_b32 s50, s50, 6")
    e("s_mov_b64 exec, 1")
    e("v_mov_b32 v250, 0")
    for kk in range(16):
        e("v_mov_b32 v251, s%d" % (60 + kk))
        e("buffer_store_dword v251, v250, s[52:55], s50 offen offset:%d" % (4 * kk))
    L.append("L_end:")
    e("s_endpgm")
    return HEADER % (64 * 1024, NAME, NAME, NAME) + "\n".join(L) + FOOTER % NAME

if __name__ == "__main__":
    out = sys.argv[1]
    o = {}
    for a in sys.argv[2:]:
        k, v = a.split("=")
        o[k] = v
    open(out, "w").write(build(o))
```

```python
import sys
import struct

NAME = "standalone__autoregressive_conv_wavenet__speech"

HEADER = """; Kernarg layout for this problem (48 bytes, ptrs only, base s[0:1]):
; @launch grid=(250,1,1) block=(512,1,1) lds=%d
.amdgcn_target "amdgcn-amd-amdhsa--gfx950"
.text
.globl %s_kernel
.p2align 8
.type %s_kernel,@function
%s_kernel:
"""

FOOTER = """
.section .rodata,"a"
.p2align 6
.amdhsa_kernel %s_kernel
  .amdhsa_next_free_vgpr 256
  .amdhsa_next_free_sgpr 102
  .amdhsa_accum_offset 256
  .amdhsa_group_segment_fixed_size 0
  .amdhsa_kernarg_size 48
  .amdhsa_user_sgpr_count 2
  .amdhsa_user_sgpr_kernarg_segment_ptr 1
  .amdhsa_system_sgpr_workgroup_id_x 1
.end_amdhsa_kernel
"""

PIECE = 1056
CHUNK = 17 * PIECE
XBYTES = 4 * CHUNK
RING0 = XBYTES
NRING = 8
WOB = RING0 + 65536
NWO = 6
FLG = WOB + 4 * NWO * 1024
LDS_TOTAL = FLG + 256
F_X = 0
F_ZH = 32
F_ZL = 64


def f32bits(x):
    return struct.unpack("<I", struct.pack("<f", x))[0]


ACC = 0
BREG = 128
AREG = 160
(V_WD0, V_WD1, V_A0, V_A1, V_X, V_Z, V_ZW, V_WOD, V_OA, V_OUT, V_XD, V_FL, V_F, V_ONE, V_PF, V_FA) = range(224, 240)
V_DUMMY = 240
V_LANE = 244
V_PFA, V_PFB, V_PFC, V_SG = 245, 246, 247, 248
V_WD2, V_WD3, V_A2, V_A3 = 249, 252, 253, 254
V_WDS = [V_WD0, V_WD1, V_WD2, V_WD3]
V_AS = [V_A0, V_A1, V_A2, V_A3]
F_E = 128
F_D = 40
F_XD = 44
S_CK = 92
V_CK = 255
V_XB = 243
V_EP = 242

S_X, S_W, S_WO, S_OUT, S_X0 = 12, 16, 20, 24, 28
S_WAVE = 32
S_IT = 33
S_CNT = 34
S_SOFF = 35
S_T0, S_T1, S_T2, S_T3 = 36, 37, 38, 39
S_G0 = 40
S_RING = 41
S_C1, S_C2, S_CL = 42, 43, 44
S_HOOK = 45
S_XM = 48
S_XS = 49
S_WOR = 56
S_ISL = 57
S_HOOK2 = 90
S_WPF = 91
S_I, S_P0, S_P1, S_P2, S_PD = 93, 94, 95, 96, 97


def acc(a, j):
    return ACC + (j * 4 + a) * 4


def vr(b, n):
    return "v[%d:%d]" % (b, b + n - 1)


def srd(b):
    return "s[%d:%d]" % (b, b + 3)


class Em:
    def __init__(self):
        self.lines = []
        self.vm = []
        self.lg = []
        self.nlab = 0

    def e(self, s):
        self.lines.append("    " + s)

    def label(self, s):
        self.lines.append(s + ":")

    def vmop(self, s, tag):
        self.e(s)
        self.vm.append(tag)

    def lgop(self, s, tag):
        self.e(s)
        self.lg.append(tag)

    def wait_vm(self, tag):
        if tag in self.vm:
            idx = len(self.vm) - 1 - self.vm[::-1].index(tag)
            n = len(self.vm) - 1 - idx
            self.e("s_waitcnt vmcnt(%d)" % min(n, 63))
            self.vm = self.vm[idx + 1:]

    def wait_lg(self, tag):
        if tag in self.lg:
            idx = len(self.lg) - 1 - self.lg[::-1].index(tag)
            n = len(self.lg) - 1 - idx
            self.e("s_waitcnt lgkmcnt(%d)" % min(n, 15))
            self.lg = self.lg[idx + 1:]

    def wait_all(self):
        self.e("s_waitcnt vmcnt(0) lgkmcnt(0)")
        self.vm = []
        self.lg = []

    def item(self, it):
        if it[0] == "op":
            self.e(it[1])
        elif it[0] == "lab":
            self.label(it[1])
        elif it[0] == "vm":
            self.vmop(it[1], it[2])
        elif it[0] == "lg":
            self.lgop(it[1], it[2])
        elif it[0] == "wvm":
            self.wait_vm(it[1])
        elif it[0] == "wlg":
            self.wait_lg(it[1])


def stamp(em, opts, k, real=False):
    if not opts.get("stamp"):
        return
    em.e("%s s[50:51]" % ("s_memrealtime" if (real or opts.get("rt")) else "s_memtime"))
    em.e("s_waitcnt lgkmcnt(0)")
    em.lg = []
    em.e("s_mov_b32 s%d, s50" % (60 + k))


def pstamp(em, opts, k):
    if opts.get("stamp") != 1:
        return
    em.e("s_memtime s[%d:%d]" % (80 + 2 * (k - 11), 81 + 2 * (k - 11)))


def pcollect(em, opts):
    if opts.get("stamp") != 1:
        return
    for k in range(11, 16):
        em.e("s_mov_b32 s%d, s%d" % (60 + k, 80 + 2 * (k - 11)))


def stamp_out(em, opts):
    if not opts.get("stamp"):
        return
    stamp(em, opts, 1, real=True)
    e = em.e
    if opts.get("dbg"):
        stamp(em, opts, 15)
        e("s_load_dwordx2 s[52:53], s[0:1], 32")
        e("s_waitcnt lgkmcnt(0)")
        e("s_mov_b32 s54, 256")
        e("s_mov_b32 s55, 0x00020000")
        e("s_mov_b64 exec, 1")
        e("v_mov_b32 v250, 0")
        e("v_mov_b32 v251, s61")
        e("buffer_atomic_umax v251, v250, s[52:55], 0 offen offset:0")
        e("s_not_b32 s50, s60")
        e("v_mov_b32 v251, s50")
        e("buffer_atomic_umax v251, v250, s[52:55], 0 offen offset:4")
        e("s_sub_u32 s50, s75, s62")
        e("v_mov_b32 v251, s50")
        e("buffer_atomic_umax v251, v250, s[52:55], 0 offen offset:8")
        e("s_sub_u32 s50, s61, s60")
        e("v_mov_b32 v251, s50")
        e("buffer_atomic_umax v251, v250, s[52:55], 0 offen offset:12")
        e("s_lshl_b32 s50, s2, 3")
        e("s_add_u32 s50, s50, s%d" % S_WAVE)
        e("s_cmp_lg_u32 s50, 800")
        e("s_cbranch_scc1 L_dbgx%d" % em.nlab)
        for k in range(3, 15):
            e("s_sub_u32 s50, s%d, s62" % (60 + k))
            e("v_mov_b32 v251, s50")
            e("buffer_store_dword v251, v250, s[52:55], 0 offen offset:%d" % (4 * (k + 1)))
        em.label("L_dbgx%d" % em.nlab)
        em.nlab += 1
        return
    e("s_mov_b32 s52, s46")
    e("s_mov_b32 s53, s47")
    e("s_mov_b32 s54, 0x100000")
    e("s_mov_b32 s55, 0x00020000")
    e("s_lshl_b32 s50, s2, 3")
    e("s_add_u32 s50, s50, s%d" % S_WAVE)
    e("s_lshl_b32 s50, s50, 6")
    e("s_mov_b64 exec, 1")
    e("v_mov_b32 v250, 0")
    for k in range(16):
        e("v_mov_b32 v251, s%d" % (60 + k))
        e("buffer_store_dword v251, v250, s[52:55], s50 offen offset:%d" % (4 * k))


def gate_tile(em, j, zreg, P, role):
    T = BREG
    for a01 in range(2):
        f = acc(a01, j)
        g = acc(2 + a01, j)
        t1 = [T + 0 + r for r in range(4)]
        t2 = [T + 4 + r for r in range(4)]
        d1 = [T + 8 + r for r in range(4)]
        zz = [T + 12 + r for r in range(4)]

        def mix(d, sc, r):
            return "v_fma_mix_f32 v%d, s%d, v%d, 0 op_sel:[0,%d,0] op_sel_hi:[0,1,0]" % (d, sc, P + 2 * a01 + (r >> 1), r & 1)

        def muls(ro):
            if ro == 0:
                return ["v_mul_f32 v%d, s%d, v%d" % (t1[r], S_C1, f + r) for r in range(4)] + [mix(t2[r], S_C2, r) for r in range(4)]
            return [mix(t1[r], S_C1, r) for r in range(4)] + ["v_mul_f32 v%d, s%d, v%d" % (t2[r], S_C2, g + r) for r in range(4)]
        role(muls, None)
        for r in range(4):
            em.e("v_min_f32 v%d, s%d, v%d" % (t1[r], S_CL, t1[r]))
        for r in range(4):
            em.e("v_exp_f32 v%d, v%d" % (t2[r], t2[r]))
        for r in range(4):
            em.e("v_exp_f32 v%d, v%d" % (t1[r], t1[r]))
        em.e("s_nop 0")
        for r in range(4):
            em.e("v_add_f32 v%d, 1.0, v%d" % (d1[r], t1[r]))
        for r in range(4):
            em.e("v_fma_f32 v%d, v%d, v%d, v%d" % (d1[r], d1[r], t2[r], d1[r]))
        for r in range(4):
            em.e("v_rcp_f32 v%d, v%d" % (d1[r], d1[r]))
        for r in range(4):
            em.e("v_sub_f32 v%d, 1.0, v%d" % (t1[r], t1[r]))
        for r in range(4):
            em.e("v_mul_f32 v%d, v%d, v%d" % (zz[r], t1[r], d1[r]))
        em.e("v_cvt_pk_bf16_f32 v%d, v%d, v%d" % (zreg + 2 * a01, zz[0], zz[1]))
        em.e("v_cvt_pk_bf16_f32 v%d, v%d, v%d" % (zreg + 2 * a01 + 1, zz[2], zz[3]))


def build(opts):
    em = Em()
    e = em.e
    GR = [int(v) for v in str(opts.get("gr", "0,16")).split(",")]
    GD = [int(v) for v in str(opts.get("gd", "7,9,23,25")).split(",")]
    XL = int(opts.get("xl", 2))
    XR = [int(v) for v in str(opts.get("xr", "0,1,2,3,4")).split(",")]
    XG = [int(v) for v in str(opts.get("xg", "2,2,2,2,2")).split(",")]
    RS = int(opts.get("rs", 7))
    assert RS >= max(XR) + 3 or (RS == max(XR) + 2)
    e("s_cmp_ge_u32 s2, 250")
    e("s_cbranch_scc1 L_end")
    e("s_load_dwordx4 s[4:7], s[0:1], 0")
    e("s_load_dwordx4 s[8:11], s[0:1], 16")
    if opts.get("stamp"):
        e("s_load_dwordx2 s[46:47], s[0:1], 40")
        for k in range(16):
            e("s_mov_b32 s%d, 0" % (60 + k))
        e("s_memrealtime s[58:59]")
        e("%s s[50:51]" % ("s_memrealtime" if opts.get("rt") else "s_memtime"))
    e("v_and_b32 v0, 0x3ff, v0")
    e("v_lshrrev_b32 v1, 6, v0")
    CPF = int(opts.get("cpf", 0))
    if CPF:
        e("s_getpc_b64 s[98:99]")
        em.label("L_pc")
        e("v_and_b32 v2, 1, v0")
        e("v_lshlrev_b32 v2, 7, v2")
        e("v_lshl_add_u32 v2, v1, 8, v2")
        e("s_lshr_b32 s36, s2, 3")
        e("s_lshl_b32 s36, s36, 10")
        e("s_add_u32 s36, s36, 2048")
        e("v_lshl_add_u32 v3, v1, 7, s36")
        e("v_and_b32 v4, 32, v0")
        e("v_cmp_eq_u32 vcc, 0, v4")
        e("v_cndmask_b32 v2, v3, v2, vcc")
        e("v_min_u32 v2, L_end-L_pc, v2")
        e("global_load_dword v%d, v2, s[98:99]" % V_DUMMY)
    e("v_and_b32 v%d, 63, v0" % V_LANE)
    e("v_readfirstlane_b32 s%d, v1" % S_WAVE)
    L = V_LANE
    e("v_lshrrev_b32 v5, 3, v%d" % L)
    e("v_lshlrev_b32 v5, 9, v5")
    e("v_and_b32 v6, 7, v%d" % L)
    e("v_lshl_add_u32 v%d, v6, 4, v5" % V_XD)
    e("s_lshl_b32 s%d, s2, 16" % S_G0)
    e("s_cmp_eq_u32 s2, 0")
    e("s_cselect_b32 s%d, 1, 0" % S_T3)
    e("s_cmp_eq_u32 s2, 125")
    e("s_cselect_b32 s%d, 1, s%d" % (S_T3, S_T3))
    e("s_and_b32 s%d, s%d, 3" % (S_T2, S_WAVE))
    e("s_cmp_eq_u32 s%d, 0" % S_T2)
    e("s_cselect_b32 s%d, s%d, 0" % (S_T3, S_T3))
    e("s_mul_i32 s%d, s%d, %d" % (S_XM, S_T2, PIECE))
    e("s_lshl_b32 s%d, s%d, 12" % (S_XS, S_T2))
    e("s_add_u32 s%d, s%d, s%d" % (S_XS, S_XS, S_G0))
    e("s_sub_u32 s%d, s%d, 4096" % (S_XS, S_XS))
    e("s_lshr_b32 s%d, s%d, 2" % (S_ISL, S_WAVE))
    e("v_lshrrev_b32 v1, 5, v%d" % L)
    e("v_bfe_u32 v2, v%d, 3, 2" % L)
    e("v_lshlrev_b32 v5, 13, v1")
    e("v_lshl_add_u32 v5, v2, 10, v5")
    e("v_lshrrev_b32 v1, 4, v%d" % L)
    e("v_lshlrev_b32 v6, 1, v1")
    e("v_and_b32 v3, 7, v%d" % L)
    e("v_xor_b32 v6, v6, v3")
    e("v_lshl_add_u32 v5, v6, 4, v5")
    e("s_lshr_b32 s%d, s%d, 1" % (S_T0, S_WAVE))
    e("s_lshl_b32 s%d, s%d, 7" % (S_T0, S_T0))
    e("s_and_b32 s%d, s%d, 1" % (S_T1, S_WAVE))
    e("s_lshl_b32 s%d, s%d, 9" % (S_T1, S_T1))
    e("s_add_u32 s%d, s%d, s%d" % (S_T0, S_T0, S_T1))
    e("v_add_u32 v%d, s%d, v5" % (V_WD0, S_T0))
    e("v_add_u32 v%d, 0x4000, v%d" % (V_WD1, V_WD0))
    e("v_add_u32 v%d, 0x1000, v%d" % (V_WD2, V_WD0))
    e("v_add_u32 v%d, 0x5000, v%d" % (V_WD3, V_WD0))
    e("v_bfe_u32 v2, v%d, 2, 2" % L)
    e("v_and_b32 v3, 3, v%d" % L)
    e("v_and_b32 v4, 1, v1")
    e("s_lshl_b32 s%d, s%d, 13" % (S_RING, S_WAVE))
    e("s_add_u32 s%d, s%d, %d" % (S_RING, S_RING, RING0))
    for (sr, p, nbytes) in ((S_X, 4, 16384000), (S_X0, 4, 16384000), (S_W, 6, 1310720), (S_WO, 8, 131072), (S_OUT, 10, 16384000)):
        e("s_mov_b32 s%d, %d" % (sr + 2, nbytes))
        e("s_mov_b32 s%d, 0x00020000" % (sr + 3))
    e("s_cmp_eq_u32 s%d, 1" % S_T3)
    e("s_cselect_b32 s%d, 0, s%d" % (S_X0 + 2, S_X0 + 2))
    e("s_waitcnt lgkmcnt(0)")
    if opts.get("stamp"):
        e("s_mov_b32 s60, s58")
        e("s_mov_b32 s62, s50")
    pstamp(em, opts, 11)
    for (sr, p) in ((S_X, 4), (S_X0, 4), (S_W, 6), (S_WO, 8), (S_OUT, 10)):
        e("s_mov_b64 s[%d:%d], s[%d:%d]" % (sr, sr + 1, p, p + 1))

    def xpiece(i):
        return [("op", "s_add_u32 m0, s%d, %d" % (S_XM, 4 * i * PIECE)),
                ("op", "s_add_u32 s%d, s%d, %d" % (S_T2, S_XS, 4 * i * 4096)),
                ("op", "buffer_load_dwordx4 v%d, %s, s%d offen lds" % (V_XD, srd(S_X0 if i == 0 else S_X), S_T2))]

    def soff_const(step):
        it, rel = divmod(step, 10)
        kh, tap = divmod(rel, 5)
        return it, tap * 262144 + kh * 32768

    def dma_items(step, u):
        slot = (4 * step + u) % NRING
        m0 = ("op", "s_add_u32 m0, s%d, %d" % (S_RING, slot * 1024))
        d = ("vm", "buffer_load_dwordx4 v%d, %s, s%d offen lds" % (V_WDS[u], srd(S_W), S_SOFF), ("u", step, u))
        return m0, d

    def tr_items(step, h):
        slot = (4 * step + 2 * h) % NRING
        ab = AREG + 16 * (step % 2)
        out = [("wvm", ("u", step, 2 * h + 1))]
        for a in range(4):
            d = ab + 4 * a + 2 * h
            out.append(("lg", "ds_read_b64_tr_b16 %s, v%d offset:%d" % (vr(d, 2), V_AS[a], slot * 1024), ("a", step, h, a)))
        return out

    def ring_fill(st, track=True):
        e("s_mov_b32 s%d, %d" % (S_SOFF, soff_const(st)[1]))
        for u in range(4):
            m0, d = dma_items(st, u)
            em.item(m0)
            e("s_nop 0")
            if track:
                em.item(d)
            else:
                e(d[1])

    LPRE = int(opts.get("lpre", 1))
    XPW = int(opts.get("xpw", 0))
    e("s_lshr_b32 s%d, s2, 3" % S_I)
    e("s_cmp_eq_u32 s%d, 0" % S_ISL)
    e("s_cbranch_scc1 L_hpro")
    for i in range(4):
        for it in xpiece(i):
            em.item(it)
    e("s_cmp_lg_u32 s%d, 4" % S_WAVE)
    e("s_cbranch_scc1 L_ppro")
    for it in xpiece(4):
        em.item(it)
    e("s_branch L_ppro")
    em.label("L_hpro")
    ring_fill(0)
    ring_fill(1)
    em.label("L_ppro")
    pstamp(em, opts, 12)
    e("s_and_b32 s%d, s%d, 3" % (S_T2, S_WAVE))
    SPF = str(opts.get("spf", ""))
    if SPF:
        e("s_and_b32 s%d, s%d, 1" % (S_T0, S_T2))
        e("s_lshl_b32 s%d, s%d, 7" % (S_T0, S_T0))
        e("s_lshr_b32 s%d, s%d, 1" % (S_T1, S_T2))
        e("s_lshl_b32 s%d, s%d, 9" % (S_T1, S_T1))
        e("s_add_u32 s%d, s%d, s%d" % (S_T0, S_T0, S_T1))
        e("s_lshl_b32 s%d, s%d, 8" % (S_T1, S_ISL))
        e("s_add_u32 s%d, s%d, s%d" % (S_T0, S_T0, S_T1))
        e("s_lshl_b32 s%d, s%d, 10" % (S_P0, S_I))
        e("s_add_u32 s%d, s%d, s%d" % (S_P0, S_P0, S_T0))
        e("s_add_u32 s%d, s%d, %d" % (S_P1, S_P0, 229376))
        e("s_add_u32 s%d, s%d, %d" % (S_P2, S_P0, 1048576))
        q0, q1 = [int(v) for v in SPF.split("-")]
        for q in range(q0, q1):
            cs, tap = divmod(q, 5)
            c1 = tap * 262144 + cs * 32768 - q * 1024
            e("s_cmp_ge_u32 s%d, %d" % (S_I, q))
            if tap:
                imm = c1 - 229376
                e("s_cselect_b32 s%d, s%d, s%d" % (S_T0, S_P1, S_P0))
            else:
                imm = c1
                e("s_cselect_b32 s%d, s%d, s%d" % (S_T0, S_P0, S_P2))
            assert imm >= 0
            e("s_buffer_load_dword s%d, %s, s%d offset:%d" % (S_PD, srd(S_W), S_T0, imm))
    pstamp(em, opts, 13)
    e("s_add_u32 s%d, s%d, 1" % (S_T0, S_ISL))
    e("s_mul_i32 s%d, s%d, %d" % (S_T1, S_T0, CHUNK))
    e("s_add_u32 s%d, s%d, s%d" % (S_XM, S_XM, S_T1))
    e("s_lshl_b32 s%d, s%d, 7" % (S_T1, S_T0))
    e("s_add_u32 s%d, s%d, s%d" % (S_XS, S_XS, S_T1))
    e("s_lshl_b32 s%d, s%d, 2" % (S_T1, S_T0))
    e("s_add_u32 s%d, s%d, %d" % (S_T1, S_T1, FLG + F_X))
    e("v_mov_b32 v%d, s%d" % (V_SG, S_T1))
    e("s_mov_b32 s%d, 1" % S_HOOK)
    e("s_cmp_eq_u32 s%d, 0" % S_T2)
    e("s_cselect_b32 s%d, 1, 0" % S_HOOK2)
    XPF = int(opts.get("xpf", 0))
    if XPF:
        e("s_mul_i32 s%d, s%d, %d" % (S_T0, S_T2, 34 * 512))
        e("s_add_u32 s%d, s%d, s%d" % (S_T0, S_T0, S_G0))
        e("s_sub_u32 s%d, s%d, %d" % (S_T0, S_T0, 4096 - 128))
        for k, dst in ((0, V_PFA), (1, V_PFB)):
            e("v_add_u32 v5, %d, v%d" % (64 * k, L))
            e("v_mul_u32_u24 v6, 0x788, v5")
            e("v_lshrrev_b32 v6, 16, v6")
            e("v_mul_u32_u24 v7, 34, v6")
            e("v_sub_u32 v7, v5, v7")
            e("v_lshlrev_b32 v7, 9, v7")
            e("v_lshl_add_u32 v7, v6, 7, v7")
            e("v_add_u32 v7, s%d, v7" % S_T0)
            e("v_max_i32 v7, 0, v7")
            e("v_cmp_gt_u32 vcc, 102, v5")
            e("v_mov_b32 v6, 0x7fffff00")
            e("v_cndmask_b32 v%d, v6, v7, vcc" % dst)

    def xprefetch():
        n = 0
        for v in (V_PFA, V_PFB):
            for hh in range(XPF):
                e("buffer_load_dword v%d, v%d, %s, 0 offen offset:%d" % (V_DUMMY, v, srd(S_X), 64 * hh))
                n += 1
        return n
    e("s_lshl_b32 s%d, s%d, 13" % (S_T0, S_I))
    e("v_lshlrev_b32 v5, 7, v%d" % L)
    e("v_add_u32 v%d, s%d, v5" % (V_PFC, S_T0))
    if int(opts.get("opf", 0)) & 1:
        e("v_and_b32 v5, 3, v%d" % L)
        e("s_lshl_b32 s%d, s%d, 14" % (S_T0, S_T2))
        e("v_lshl_add_u32 v%d, v5, 12, s%d" % (V_PFA, S_T0))
    WPF = int(opts.get("wpf", -1))
    if WPF >= 0:
        WQ0 = int(opts.get("wq0", 14))
        e("s_add_u32 s%d, s%d, %d" % (S_T0, S_I, WQ0))
        e("s_mul_i32 s%d, s%d, 52" % (S_T1, S_T0))
        e("s_lshr_b32 s%d, s%d, 8" % (S_T1, S_T1))
        e("s_mul_i32 s%d, s%d, 5" % (S_T3, S_T1))
        e("s_sub_u32 s%d, s%d, s%d" % (S_T3, S_T0, S_T3))
        e("s_lshl_b32 s%d, s%d, 18" % (S_T3, S_T3))
        e("s_lshl_b32 s%d, s%d, 15" % (S_T1, S_T1))
        e("s_add_u32 s%d, s%d, s%d" % (S_T3, S_T3, S_T1))
        e("s_sub_u32 s%d, s%d, 40" % (S_T1, S_T0))
        e("s_lshl_b32 s%d, s%d, 15" % (S_T1, S_T1))
        e("s_cmp_lt_u32 s%d, 40" % S_T0)
        e("s_cselect_b32 s%d, s%d, s%d" % (S_T3, S_T3, S_T1))
        e("s_cselect_b32 s%d, 1, 2" % S_WPF)
        e("s_lshl_b32 s%d, s%d, 12" % (S_T1, S_WAVE))
        e("s_add_u32 s%d, s%d, s%d" % (S_T3, S_T3, S_T1))
        e("v_and_b32 v5, 31, v%d" % L)
        e("v_lshl_add_u32 v%d, v5, 7, s%d" % (V_PFB, S_T3))
    e("s_mov_b32 s%d, 0x%08x" % (S_C1, f32bits(-2.0 * 1.4426950408889634)))
    e("s_mov_b32 s%d, 0x%08x" % (S_C2, f32bits(-1.4426950408889634)))
    e("s_mov_b32 s%d, 0x%08x" % (S_CL, f32bits(30.0)))
    e("v_lshlrev_b32 v5, 9, v1")
    e("v_lshl_add_u32 v5, v2, 7, v5")
    e("v_lshl_add_u32 v6, v4, 6, v5")
    e("v_lshrrev_b32 v7, 1, v2")
    e("v_lshl_add_u32 v6, v7, 5, v6")
    e("v_lshl_add_u32 v6, v3, 3, v6")
    for a in range(4):
        if a:
            e("v_xor_b32 v7, %d, v6" % (32 * a))
            e("v_add_u32 v%d, s%d, v7" % (V_AS[a], S_RING))
        else:
            e("v_add_u32 v%d, s%d, v6" % (V_AS[a], S_RING))
    e("v_lshrrev_b32 v5, 1, v5")
    e("s_and_b32 s%d, s%d, 3" % (S_T2, S_WAVE))
    e("s_mul_i32 s%d, s%d, %d" % (S_WOR, S_T2, NWO * 1024))
    e("s_add_u32 s%d, s%d, %d" % (S_WOR, S_WOR, WOB))
    e("v_lshl_add_u32 v6, v3, 4, v5")
    e("v_add_u32 v%d, s%d, v6" % (V_OA, S_WOR))
    e("v_lshrrev_b32 v6, 2, v%d" % L)
    e("v_lshlrev_b32 v6, 9, v6")
    e("v_lshl_add_u32 v6, v3, 4, v6")
    e("s_lshl_b32 s%d, s%d, 7" % (S_T2, S_T2))
    e("v_add_u32 v%d, s%d, v6" % (V_WOD, S_T2))
    e("v_and_b32 v7, 15, v%d" % L)
    e("s_mov_b32 s%d, %d" % (S_T1, PIECE))
    e("v_mul_lo_u32 v5, v7, s%d" % S_T1)
    e("v_lshl_add_u32 v%d, v1, 4, v5" % V_X)
    if int(opts.get("fl", 0)):
        e("v_and_b32 v5, 7, v7")
        e("v_lshlrev_b32 v5, 12, v5")
        e("v_lshrrev_b32 v7, 3, v7")
        e("v_lshl_add_u32 v5, v7, 6, v5")
    else:
        e("v_lshlrev_b32 v5, 12, v7")
    e("v_lshl_add_u32 v5, v1, 4, v5")
    e("v_add_u32 v%d, s%d, v5" % (V_OUT, S_T2))
    e("v_lshlrev_b32 v5, 4, v%d" % L)
    e("v_add_u32 v%d, %d, v5" % (V_Z, RING0))
    e("v_add_u32 v%d, s%d, v5" % (V_ZW, S_RING))
    e("v_mov_b32 v%d, %d" % (V_FA, FLG))
    e("v_mov_b32 v%d, %d" % (V_FL, FLG + F_X + 4))
    e("v_mov_b32 v%d, 1" % V_ONE)
    e("s_cmp_lg_u32 s%d, 4" % S_WAVE)
    e("s_cbranch_scc1 L_nofl")
    e("v_lshlrev_b32 v5, 2, v%d" % L)
    e("v_add_u32 v5, %d, v5" % FLG)
    e("v_cmp_eq_u32 vcc, 4, v%d" % L)
    e("v_mov_b32 v6, 0")
    e("s_nop 0")
    e("v_cndmask_b32 v6, v6, v%d, vcc" % L)
    e("ds_write_b32 v5, v6")
    em.label("L_nofl")
    e("s_lshl_b32 s%d, s%d, 2" % (S_T0, S_WAVE))
    e("s_add_u32 s%d, s%d, %d" % (S_T0, S_T0, FLG + F_E))
    e("v_mov_b32 v%d, s%d" % (V_EP, S_T0))
    e("s_and_b32 vcc_lo, s%d, 1" % S_WAVE)
    e("s_mov_b32 vcc_hi, 0")
    for r in range(128):
        e("v_mov_b32 v%d, 0" % (ACC + r))
    e("s_mov_b32 s%d, 0" % S_IT)
    e("s_mov_b32 s%d, 0" % S_CNT)
    pstamp(em, opts, 14)

    def soff_item(step, cur):
        it, c = soff_const(step)
        return ("op", "s_add_u32 s%d, s%d, %d" % (S_SOFF, S_IT, c + (it - cur) * 65536))

    def cold_a():
        em.item(soff_item(2, 0))
        for h in range(2):
            for it in tr_items(0, h):
                em.item(it)
        for u in range(4):
            m0, d = dma_items(2, u)
            em.item(m0)
            em.wait_lg(("a", 0, u >> 1, 3))
            e("s_nop 0")
            em.item(d)

    e("s_setprio 3")
    e("s_cmp_eq_u32 s%d, 0" % S_ISL)
    e("s_cbranch_scc1 L_hw")
    for st in range(LPRE):
        ring_fill(st, False)
    npf = xprefetch() if XPW == 0 else 0
    e("s_waitcnt vmcnt(%d) lgkmcnt(0)" % (4 * LPRE + npf))
    e("s_barrier")
    for st in range(LPRE, 2):
        ring_fill(st, False)
    if XPW == 1:
        xprefetch()
    sv = (list(em.vm), list(em.lg))
    cold_a()
    em.vm, em.lg = sv
    if XPW == 2:
        xprefetch()
    e("s_branch L_bar")
    em.label("L_hw")
    cold_a()
    pstamp(em, opts, 15)
    e("s_barrier")
    em.label("L_bar")
    stamp(em, opts, 3)
    pcollect(em, opts)

    slotkey = [None] * 8

    def bkey(step, j):
        cs, tap = divmod(step, 5)
        sidx = j - 2 * tap + 8
        return sidx & 7, (cs, sidx)

    def bread(step, j):
        slot, key = bkey(step, j)
        if slotkey[slot] == key:
            return None
        slotkey[slot] = key
        cs, tap = divmod(step, 5)
        sidx = j - 2 * tap + 8
        off = (sidx >> 3) * PIECE + (sidx & 7) * 128 + (cs & 1) * 64
        return ("lg", "ds_read_b128 %s, v%d offset:%d" % (vr(BREG + 4 * slot, 4), V_X, off), ("b", key))

    for j in range(7, -1, -1):
        em.item(bread(0, j))
    if int(opts.get("order", 0)) in (0, 2):
        e("s_waitcnt lgkmcnt(6)")
        em.lg = em.lg[-6:]
    else:
        e("s_waitcnt lgkmcnt(0)")
        em.lg = []
    stamp(em, opts, 4)

    def hook(items, lab):
        return [("op", "s_cmp_eq_u32 s%d, 0" % S_HOOK), ("op", "s_cbranch_scc1 %s" % lab)] + items + [("lab", lab)]

    def signal(c):
        return [("op", "ds_add_u32 v%d, v%d offset:%d" % (V_FA, V_ONE, F_X + 4 * c))]

    def gstep(step):
        rel = step % 10
        cur = step // 10
        ab = AREG + 16 * (step % 2)
        gaps = [[] for _ in range(33)]
        gaps[0].append(soff_item(step + 3, cur))
        if rel == 7:
            gaps[0].append(("op", "s_cmp_eq_u32 s%d, 3" % S_CNT))
            gaps[0].append(("op", "s_cselect_b32 s%d, 0, s%d" % (S_W + 2, S_W + 2)))
        for h in range(2):
            for it in tr_items(step + 1, h):
                gaps[GR[h]].append(it)
        for u in range(4):
            m0, d = dma_items(step + 3, u)
            gaps[GD[u] - 1].append(m0)
            gaps[GD[u]].append(("wlg", ("a", step + 1, u >> 1, 3)))
            gaps[GD[u]].append(d)
        sig = [("op", "s_mov_b64 exec, 1"),
               ("op", "ds_add_u32 v%d, v%d" % (V_SG, V_ONE)),
               ("op", "s_mov_b64 exec, -1")]
        for i in range(5):
            if XR[i] == rel and not opts.get("nox"):
                lab = "L_hx%d" % i
                gaps[XG[i]] += [("op", "s_cmp_eq_u32 s%d, 0" % (S_HOOK2 if i == 4 else S_HOOK)), ("op", "s_cbranch_scc1 %s" % lab)] + xpiece(i) + [("lab", lab)]
        if rel == RS:
            gaps[2] += hook(sig, "L_hsig")
        if rel == WPF:
            gaps[11] += [("op", "s_cmp_eq_u32 s%d, 0" % S_WPF), ("op", "s_cbranch_scc1 L_nwpf"),
                         ("op", "s_cmp_eq_u32 s%d, 1" % S_WPF), ("op", "s_mov_b32 s%d, 0" % S_WPF), ("op", "s_cbranch_scc0 L_wpf2"),
                         ("op", "buffer_load_dword v%d, v%d, %s, 0 offen" % (V_DUMMY, V_PFB, srd(S_W))),
                         ("op", "s_branch L_nwpf"), ("lab", "L_wpf2"),
                         ("op", "buffer_load_dword v%d, v%d, %s, 0 offen" % (V_DUMMY, V_PFB, srd(S_WO))),
                         ("lab", "L_nwpf")]
        if rel == 8:
            gaps[10].append(("lg", "ds_read_b32 v%d, v%d" % (V_F, V_FL), ("fl", step)))
        pre = []
        if rel == 9:
            pre = [("wlg", ("fl", step - 1)),
                   ("op", "v_readfirstlane_b32 s%d, v%d" % (S_T0, V_F)),
                   ("op", "v_add_u32 v%d, %d, v%d" % (V_X, CHUNK, V_X)),
                   ("op", "s_cmp_eq_u32 s%d, 4" % S_T0),
                   ("op", "s_cbranch_scc1 L_pok"),
                   ("lab", "L_pspin"),
                   ("op", "ds_read_b32 v%d, v%d" % (V_F, V_FL)),
                   ("op", "s_waitcnt lgkmcnt(0)"),
                   ("op", "v_readfirstlane_b32 s%d, v%d" % (S_T0, V_F)),
                   ("op", "s_cmp_eq_u32 s%d, 4" % S_T0),
                   ("op", "s_cbranch_scc0 L_pspin"),
                   ("lab", "L_pok"),
                   ("op", "v_add_u32 v%d, 4, v%d" % (V_FL, V_FL))]
        for it in pre:
            em.item(it)
        nxt = step + 1
        pending = {}
        for j2 in range(8):
            slot, key = bkey(nxt, j2)
            pending[slot] = j2
        k = 0
        ORD = int(opts.get("order", 0))
        if ORD == 0:
            seq = [(j, a) for j in range(7, -1, -1) for a in range(4)]
        elif ORD == 1:
            seq = [(j, a) for a in range(4) for j in range(7, -1, -1)]
        elif ORD == 2:
            seq = [(j, (a if (j & 1) else 3 - a)) for j in range(7, -1, -1) for a in range(4)]
        elif ORD == 3:
            seq = [(j, 2 * ah + a) for ah in range(2) for j in range(7, -1, -1) for a in range(2)]
        last = {}
        for idx, (j, a) in enumerate(seq):
            last[j] = idx
        for idx, (j, a) in enumerate(seq):
            slot, key = bkey(step, j)
            em.wait_lg(("b", key))
            em.wait_lg(("a", step, 1, a))
            em.e("v_mfma_f32_16x16x32_bf16 %s, %s, %s, %s" % (
                vr(acc(a, j), 4), vr(ab + 4 * a, 4), vr(BREG + 4 * slot, 4), vr(acc(a, j), 4)))
            if last[j] == idx and slot in pending:
                it = bread(nxt, pending[slot])
                if it:
                    em.item(it)
            for it in gaps[k]:
                em.item(it)
            k += 1

    def role(fn, tag=None):
        n = em.nlab
        em.nlab += 1
        e("s_cbranch_vccnz L_ro%d" % n)
        for k, l in enumerate(fn(0)):
            if l.startswith("ds_"):
                em.lgop(l, (tag, k))
            else:
                e(l)
        e("s_branch L_re%d" % n)
        em.label("L_ro%d" % n)
        for l in fn(1):
            e(l)
        em.label("L_re%d" % n)

    def xsend(j):
        tp = 192 + 4 * (j & 1)
        role(lambda r: ["v_cvt_pk_f16_f32 v%d, v%d, v%d" % (tp + i, acc(2 - 2 * r, j) + 2 * i, acc(2 - 2 * r, j) + 2 * i + 1) for i in range(4)], None)
        em.lgop("ds_write_b128 v%d, %s offset:%d" % (V_ZW, vr(tp, 4), j * 1024), ("xs", j))

    def last_step(step):
        ab = AREG + 16 * (step % 2)
        for j in range(7, -1, -1):
            slot, key = bkey(step, j)
            for a in range(4):
                em.wait_lg(("b", key))
                em.wait_lg(("a", step, 1, a))
                em.e("v_mfma_f32_16x16x32_bf16 %s, %s, %s, %s" % (
                    vr(acc(a, j), 4), vr(ab + 4 * a, 4), vr(BREG + 4 * slot, 4), vr(acc(a, j), 4)))
            if j == 6:
                e("s_waitcnt vmcnt(0)")
                em.vm = []
            if j < 7:
                xsend(j + 1)
        e("s_nop 7")
        e("s_nop 7")
        xsend(0)
        e("s_mov_b64 exec, 1")
        em.lgop("ds_write_b32 v%d, v%d" % (V_EP, V_ONE), ("xf",))
        e("s_mov_b64 exec, -1")

    start = len(em.lines)
    for s in range(0, 10):
        gstep(s)
        if s == 8:
            e("s_cmp_eq_u32 s%d, 3" % S_CNT)
            e("s_cbranch_scc1 L_last")
    mid = len(em.lines)
    for s in range(10, 20):
        gstep(s)
        if s == 18:
            e("s_cmp_eq_u32 s%d, 3" % S_CNT)
            e("s_cbranch_scc1 L_last")
            snap = (list(em.vm), list(em.lg))
    end = len(em.lines)
    b1 = em.lines[start:mid]
    b2 = em.lines[mid:end]
    if b1 != b2:
        import difflib
        for l in difflib.unified_diff(b1, b2, lineterm="", n=0):
            print("DIFF", l)
    b1 = b2
    em.lines = em.lines[:start]
    if opts.get("nodma"):
        b1 = [l for l in b1 if not ("s[16:19]" in l) and "vmcnt" not in l]
    if opts.get("nomfma"):
        b1 = [l for l in b1 if "v_mfma" not in l]
    em.label("L_loop")
    em.lines += b1
    if opts.get("stamp") == 2:
        e("s_memtime s[80:81]")
        e("s_mov_b32 s71, s72")
        e("s_mov_b32 s72, s73")
        e("s_mov_b32 s73, s74")
        e("s_waitcnt lgkmcnt(0)")
        e("s_mov_b32 s74, s80")
    e("s_add_u32 s%d, s%d, 65536" % (S_IT, S_IT))
    e("s_add_u32 s%d, s%d, 1" % (S_CNT, S_CNT))
    e("s_add_u32 s%d, s%d, %d" % (S_XM, S_XM, CHUNK))
    e("s_add_u32 s%d, s%d, 128" % (S_XS, S_XS))
    e("v_add_u32 v%d, 4, v%d" % (V_SG, V_SG))
    e("s_cmp_gt_u32 s%d, s%d" % (S_CNT, S_ISL))
    e("s_cselect_b32 s%d, 0, s%d" % (S_HOOK, S_HOOK))
    e("s_cselect_b32 s%d, 0, s%d" % (S_HOOK2, S_HOOK2))
    e("s_mul_i32 s%d, s%d, %d" % (S_T0, S_ISL, XL - 1))
    e("s_add_u32 s%d, s%d, 1" % (S_T0, S_T0))
    e("s_cmp_lg_u32 s%d, s%d" % (S_T0, S_CNT))
    e("s_cbranch_scc1 L_nsp")
    e("s_setprio 1")
    e("s_cmp_lg_u32 s%d, 0" % S_ISL)
    e("s_cbranch_scc1 L_nsp")
    e("s_setprio 2")
    OPF = int(opts.get("opf", 0))
    if OPF & 1:
        e("buffer_load_dword v%d, v%d, %s, s%d offen" % (V_DUMMY, V_PFA, srd(S_OUT), S_G0))
    if OPF & 2:
        e("s_cmp_lg_u32 s%d, 0" % S_WAVE)
        e("s_cbranch_scc1 L_nsp")
        e("buffer_load_dword v%d, v%d, %s, 0 offen" % (V_DUMMY, V_PFC, srd(S_WO)))
    em.label("L_nsp")
    e("s_branch L_loop")
    em.label("L_last")
    em.vm, em.lg = snap
    if opts.get("st4"):
        stamp(em, opts, 4)
    last_step(19)
    stamp(em, opts, 5)
    V_ZP = V_WD0
    e("s_and_b32 s%d, s%d, 1" % (S_T1, S_WAVE))
    e("s_lshl_b32 s%d, s%d, 14" % (S_T0, S_T1))
    e("s_sub_u32 s%d, 8192, s%d" % (S_T0, S_T0))
    e("v_add_u32 v%d, s%d, v%d" % (V_ZP, S_T0, V_ZW))
    e("v_xor_b32 v%d, 4, v%d" % (V_EP, V_EP))

    def preg(j):
        return 240 + 4 * (j & 1) + 8

    def xrecv(j):
        em.lgop("ds_read_b128 %s, v%d offset:%d" % (vr(preg(j), 4), V_ZP, j * 1024), ("xr", j))

    def poll(lab, va, off, val):
        em.label(lab)
        e("ds_read_b32 v%d, v%d offset:%d" % (V_F, va, off))
        e("s_waitcnt lgkmcnt(0)")
        em.lg = []
        e("v_readfirstlane_b32 s%d, v%d" % (S_T0, V_F))
        e("s_cmp_eq_u32 s%d, %d" % (S_T0, val))
        e("s_cbranch_scc0 %s" % lab)
    e("s_cmp_lg_u32 s%d, 0" % S_ISL)
    e("s_cbranch_scc1 L_low")
    vm_after_loop = list(em.vm)

    e("s_setprio 0")

    def wo_dma(U):
        ks, u = divmod(U, 4)
        ch, h = u >> 1, u & 1
        slot = U % NWO
        off = slot * 1024 - ch * 64
        m0 = ("op", "s_add_u32 m0, s%d, %d" % (S_WOR, off)) if off >= 0 else ("op", "s_sub_u32 m0, s%d, %d" % (S_WOR, -off))
        so = ("op", "s_mov_b32 s%d, %d" % (S_SOFF, (32 * ks + 16 * h) * 512))
        d = ("vm", "buffer_load_dwordx4 v%d, %s, s%d offen offset:%d lds" % (V_WOD, srd(S_WO), S_SOFF, ch * 64), ("o", U))
        return [m0, so, d]

    def wo_tr(U):
        ks, u = divmod(U, 4)
        ch, h = u >> 1, u & 1
        slot = U % NWO
        ab = AREG + 16 * (ks % 4)
        out = [("wvm", ("o", U))]
        for a1 in range(2):
            d = ab + 4 * (2 * ch + a1) + 2 * h
            out.append(("lg", "ds_read_b64_tr_b16 %s, v%d offset:%d" % (vr(d, 2), V_OA, slot * 1024 + a1 * 8), ("oa", U, a1)))
        return out

    for U in range(NWO):
        for it in wo_dma(U):
            em.item(it)
    nextdma = NWO
    poll("L_xph", V_EP, 0, 1)
    xrecv(7)
    for t, j in enumerate(range(7, -1, -1)):
        zreg = BREG + 16 + 4 * (t % 4)
        if j:
            xrecv(j - 1)
        em.wait_lg(("xr", j))
        gate_tile(em, j, zreg, preg(j), role)
        em.lgop("ds_write_b128 v%d, %s offset:%d" % (V_ZP, vr(zreg, 4), j * 1024), ("zw", j))
        if t >= 1:
            em.wait_lg(("oa", 2 * t - 1, 1))
            for U in (nextdma, nextdma + 1):
                for it in wo_dma(U):
                    em.item(it)
            nextdma += 2
        for U in (2 * t, 2 * t + 1):
            for it in wo_tr(U):
                em.item(it)
    e("s_mov_b64 exec, 1")
    em.lgop("ds_add_u32 v%d, v%d offset:%d" % (V_FA, V_ONE, F_ZH), ("zf",))
    e("s_mov_b64 exec, -1")
    em.wait_lg(("oa", 15, 1))
    for U in (nextdma, nextdma + 1):
        for it in wo_dma(U):
            em.item(it)
    nextdma += 2
    stamp(em, opts, 6)
    em.label("L_zhs")
    e("ds_read_b32 v%d, v%d offset:%d" % (V_F, V_FA, F_ZH))
    e("s_waitcnt lgkmcnt(0)")
    em.lg = []
    e("v_readfirstlane_b32 s%d, v%d" % (S_T0, V_F))
    e("s_cmp_eq_u32 s%d, 4" % S_T0)
    e("s_cbranch_scc0 L_zhs")
    if opts.get("hp2"):
        e("s_setprio 2")
    stamp(em, opts, 7)

    def zread(ks, j, slot):
        return ("lg", "ds_read_b128 %s, v%d offset:%d" % (vr(BREG + 4 * slot, 4), V_Z, (ks ^ 1) * 8192 + j * 1024), ("z", ks, j))

    for j in range(7, -1, -1):
        em.item(zread(0, j, j))
    for ks in range(4):
        ab = AREG + 16 * ks
        gaps = [[] for _ in range(33)]
        if ks >= 1:
            for u in range(4):
                U = 4 * (ks + 3) + u
                for it in wo_tr(U):
                    gaps[8 * u].append(it)
                if nextdma < 32:
                    gaps[8 * u + 6].append(("wlg", ("oa", U, 1)))
                    for it in wo_dma(nextdma):
                        gaps[8 * u + 6].append(it)
                    nextdma += 1
        k = 0
        for j in range(7, -1, -1):
            em.wait_lg(("z", ks, j))
            for a in range(4):
                c = "0" if ks == 0 else vr(acc(a, j), 4)
                e("v_mfma_f32_16x16x32_bf16 %s, %s, %s, %s" % (vr(acc(a, j), 4), vr(ab + 4 * a, 4), vr(BREG + 4 * j, 4), c))
                if a == 3 and ks < 3:
                    em.item(zread(ks + 1, j, j))
                for it in gaps[k]:
                    em.item(it)
                k += 1
    assert nextdma == 32, nextdma
    for u in range(4):
        for it in wo_tr(28 + u):
            em.item(it)
    stamp(em, opts, 8)

    FL = int(opts.get("fl", 0))
    SF = str(opts.get("sf", "")).replace("+", " ")

    def epi(j, t):
        if FL:
            c0 = 240 + 8 * (t % 2)
            c1 = c0 + 4
            tp = 224
            for ch, tt in ((0, tp), (1, c1), (0, c0)):
                for a1 in range(2):
                    aa = acc(2 * ch + a1, j)
                    e("v_cvt_pk_bf16_f32 v%d, v%d, v%d" % (tt + 2 * a1, aa, aa + 1))
                    e("v_cvt_pk_bf16_f32 v%d, v%d, v%d" % (tt + 2 * a1 + 1, aa + 2, aa + 3))
            for i in range(4):
                e("v_mov_b32_dpp v%d, v%d row_ror:8 row_mask:0xf bank_mask:0xc" % (c0 + i, c1 + i))
            e("buffer_store_dwordx4 %s, v%d, %s, s%d offen offset:%d %s" % (vr(c0, 4), V_OUT, srd(S_OUT), S_G0, j * 512, SF))
            for i in range(4):
                e("v_mov_b32_dpp v%d, v%d row_ror:8 row_mask:0xf bank_mask:0x3" % (c1 + i, tp + i))
            e("buffer_store_dwordx4 %s, v%d, %s, s%d offen offset:%d %s" % (vr(c1, 4), V_OUT, srd(S_OUT), S_IT, j * 512, SF))
            return
        for ch in range(2):
            tt = 240 + 4 * ((2 * t + ch) % 4)
            for a1 in range(2):
                aa = acc(2 * ch + a1, j)
                e("v_cvt_pk_bf16_f32 v%d, v%d, v%d" % (tt + 2 * a1, aa, aa + 1))
                e("v_cvt_pk_bf16_f32 v%d, v%d, v%d" % (tt + 2 * a1 + 1, aa + 2, aa + 3))
            e("buffer_store_dwordx4 %s, v%d, %s, s%d offen offset:%d %s" % (
                vr(tt, 4), V_OUT, srd(S_OUT), S_G0, j * 512 + ch * 64, SF))

    if FL:
        e("s_add_u32 s%d, s%d, 32768" % (S_IT, S_G0))
    ROT = int(opts.get("rot", 0))

    def rot_entry(pref):
        e("s_lshr_b32 s%d, s2, %d" % (S_T3, int(opts.get("rsh", 3))))
        e("s_and_b32 s%d, s%d, 7" % (S_T3, S_T3))
        e("s_mov_b32 s%d, 0" % S_CNT)
        for r in range(1, 8):
            e("s_cmp_eq_u32 s%d, %d" % (S_T3, r))
            e("s_cbranch_scc1 %s%d" % (pref, 7 - r))

    def rot_end(pref, j, done):
        e("s_add_u32 s%d, s%d, 1" % (S_CNT, S_CNT))
        e("s_cmp_eq_u32 s%d, 8" % S_CNT)
        if j == 0:
            e("s_cbranch_scc0 %s7" % pref)
        else:
            e("s_cbranch_scc1 %s" % done)

    if ROT:
        rot_entry("L_zl")
    for t, j in enumerate(range(7, -1, -1)):
        sb = 4 * (t % 2)
        em.label("L_zl%d" % j)
        e("ds_read_b32 v%d, v%d offset:%d" % (V_F, V_FA, F_ZL + 4 * j))
        for k4 in range(4):
            e(zread(4 + k4, j, sb + k4)[1])
        e("s_waitcnt lgkmcnt(0)")
        em.lg = []
        e("v_readfirstlane_b32 s%d, v%d" % (S_T0, V_F))
        e("s_cmp_eq_u32 s%d, 4" % S_T0)
        e("s_cbranch_scc0 L_zl%d" % j)
        for k4 in range(4):
            ab = AREG + 16 * k4
            for a in range(4):
                e("v_mfma_f32_16x16x32_bf16 %s, %s, %s, %s" % (vr(acc(a, j), 4), vr(ab + 4 * a, 4), vr(BREG + 4 * (sb + k4), 4), vr(acc(a, j), 4)))
        e("s_nop 7")
        epi(j, t)
        if ROT:
            rot_end("L_zl", j, "L_zdone")
    em.label("L_zdone")
    stamp(em, opts, 9)
    if opts.get("stamp"):
        e("s_waitcnt vmcnt(0)")
    stamp(em, opts, 10)
    stamp_out(em, opts)
    e("s_endpgm")

    em.label("L_low")
    em.vm = []
    em.lg = []
    e("s_setprio 3")
    assert ROT
    poll("L_xpl", V_EP, 0, 1)
    rot_entry("L_gs")
    for j in range(7, -1, -1):
        em.label("L_gs%d" % j)
        xrecv(j)
        e("s_branch L_gl%d" % j)
    for t, j in enumerate(range(7, -1, -1)):
        zreg = BREG + 16 + 4 * (t % 4)
        em.label("L_gl%d" % j)
        xrecv((j - 1) & 7)
        e("s_waitcnt lgkmcnt(1)")
        gate_tile(em, j, zreg, preg(j), role)
        e("ds_write_b128 v%d, %s offset:%d" % (V_ZP, vr(zreg, 4), j * 1024))
        e("s_mov_b64 exec, 1")
        e("ds_add_u32 v%d, v%d offset:%d" % (V_FA, V_ONE, F_ZL + 4 * j))
        e("s_mov_b64 exec, -1")
        if ROT:
            rot_end("L_gl", j, "L_gdone")
    em.label("L_gdone")
    e("s_waitcnt lgkmcnt(0)")
    stamp(em, opts, 6)
    stamp_out(em, opts)
    em.label("L_end")
    e("s_endpgm")

    txt = HEADER % (LDS_TOTAL, NAME, NAME, NAME) + "\n".join(em.lines) + FOOTER % NAME
    return txt


if __name__ == "__main__":
    out = sys.argv[1] if len(sys.argv) > 1 else "cdna_kernels/%s.s" % NAME
    opts = {}
    for a in sys.argv[2:]:
        k, v = a.split("=")
        opts[k] = int(v) if v.isdigit() else v
    open(out, "w").write(build(opts))
    print("wrote", out)
```

```python
import sys
import struct

NAME = "standalone__autoregressive_conv_wavenet__speech"

HEADER = """; Kernarg layout for this problem (48 bytes, ptrs only, base s[0:1]):
; @launch grid=(250,1,1) block=(512,1,1) lds=%d
.amdgcn_target "amdgcn-amd-amdhsa--gfx950"
.text
.globl %s_kernel
.p2align 8
.type %s_kernel,@function
%s_kernel:
"""

FOOTER = """
.section .rodata,"a"
.p2align 6
.amdhsa_kernel %s_kernel
  .amdhsa_next_free_vgpr 256
  .amdhsa_next_free_sgpr 102
  .amdhsa_accum_offset 256
  .amdhsa_group_segment_fixed_size 0
  .amdhsa_kernarg_size 48
  .amdhsa_user_sgpr_count 2
  .amdhsa_user_sgpr_kernarg_segment_ptr 1
  .amdhsa_system_sgpr_workgroup_id_x 1
.end_amdhsa_kernel
"""

PIECE = 1056
CHUNK = 17 * PIECE
XBYTES = 4 * CHUNK
RING0 = XBYTES
NRING = 8
WOB = RING0 + 65536
NWO = 6
FLG = WOB + 4 * NWO * 1024
LDS_TOTAL = FLG + 256
F_X = 0
F_ZH = 32
F_ZL = 64


def f32bits(x):
    return struct.unpack("<I", struct.pack("<f", x))[0]


ACC = 0
BREG = 128
AREG = 160
(V_WD0, V_WD1, V_A0, V_A1, V_X, V_Z, V_ZW, V_WOD, V_OA, V_OUT, V_XD, V_FL, V_F, V_ONE, V_PF, V_FA) = range(224, 240)
V_DUMMY = 240
V_LANE = 244
V_PFA, V_PFB, V_PFC, V_SG = 245, 246, 247, 248
V_WD2, V_WD3, V_A2, V_A3 = 249, 252, 253, 254
V_WDS = [V_WD0, V_WD1, V_WD2, V_WD3]
V_AS = [V_A0, V_A1, V_A2, V_A3]
F_E = 128
F_D = 40
F_XD = 44
S_CK = 92
V_CK = 255
V_XB = 243
V_EP = 242

S_X, S_W, S_WO, S_OUT, S_X0 = 12, 16, 20, 24, 28
S_WAVE = 32
S_IT = 33
S_CNT = 34
S_SOFF = 35
S_T0, S_T1, S_T2, S_T3 = 36, 37, 38, 39
S_G0 = 40
S_RING = 41
S_C1, S_C2, S_CL = 42, 43, 44
S_HOOK = 45
S_XM = 48
S_XS = 49
S_WOR = 56
S_ISL = 57
S_HOOK2 = 90
S_WPF = 91
S_I, S_P0, S_P1, S_P2, S_PD = 93, 94, 95, 96, 97


def acc(a, j):
    return ACC + (j * 4 + a) * 4


def vr(b, n):
    return "v[%d:%d]" % (b, b + n - 1)


def srd(b):
    return "s[%d:%d]" % (b, b + 3)


class Em:
    def __init__(self):
        self.lines = []
        self.vm = []
        self.lg = []
        self.nlab = 0

    def e(self, s):
        self.lines.append("    " + s)

    def label(self, s):
        self.lines.append(s + ":")

    def vmop(self, s, tag):
        self.e(s)
        self.vm.append(tag)

    def lgop(self, s, tag):
        self.e(s)
        self.lg.append(tag)

    def wait_vm(self, tag):
        if tag in self.vm:
            idx = len(self.vm) - 1 - self.vm[::-1].index(tag)
            n = len(self.vm) - 1 - idx
            self.e("s_waitcnt vmcnt(%d)" % min(n, 63))
            self.vm = self.vm[idx + 1:]

    def wait_lg(self, tag):
        if tag in self.lg:
            idx = len(self.lg) - 1 - self.lg[::-1].index(tag)
            n = len(self.lg) - 1 - idx
            self.e("s_waitcnt lgkmcnt(%d)" % min(n, 15))
            self.lg = self.lg[idx + 1:]

    def wait_all(self):
        self.e("s_waitcnt vmcnt(0) lgkmcnt(0)")
        self.vm = []
        self.lg = []

    def item(self, it):
        if it[0] == "op":
            self.e(it[1])
        elif it[0] == "lab":
            self.label(it[1])
        elif it[0] == "vm":
            self.vmop(it[1], it[2])
        elif it[0] == "lg":
            self.lgop(it[1], it[2])
        elif it[0] == "wvm":
            self.wait_vm(it[1])
        elif it[0] == "wlg":
            self.wait_lg(it[1])


def stamp(em, opts, k, real=False):
    if not opts.get("stamp"):
        return
    em.e("%s s[50:51]" % ("s_memrealtime" if (real or opts.get("rt")) else "s_memtime"))
    em.e("s_waitcnt lgkmcnt(0)")
    em.lg = []
    em.e("s_mov_b32 s%d, s50" % (60 + k))


def pstamp(em, opts, k):
    if opts.get("stamp") != 1:
        return
    em.e("s_memtime s[%d:%d]" % (80 + 2 * (k - 11), 81 + 2 * (k - 11)))


def pcollect(em, opts):
    if opts.get("stamp") != 1:
        return
    for k in range(11, 16):
        em.e("s_mov_b32 s%d, s%d" % (60 + k, 80 + 2 * (k - 11)))


def stamp_out(em, opts):
    if not opts.get("stamp"):
        return
    stamp(em, opts, 1, real=True)
    e = em.e
    if opts.get("dbg"):
        stamp(em, opts, 15)
        e("s_load_dwordx2 s[52:53], s[0:1], 32")
        e("s_waitcnt lgkmcnt(0)")
        e("s_mov_b32 s54, 256")
        e("s_mov_b32 s55, 0x00020000")
        e("s_mov_b64 exec, 1")
        e("v_mov_b32 v250, 0")
        e("v_mov_b32 v251, s61")
        e("buffer_atomic_umax v251, v250, s[52:55], 0 offen offset:0")
        e("s_not_b32 s50, s60")
        e("v_mov_b32 v251, s50")
        e("buffer_atomic_umax v251, v250, s[52:55], 0 offen offset:4")
        e("s_sub_u32 s50, s75, s62")
        e("v_mov_b32 v251, s50")
        e("buffer_atomic_umax v251, v250, s[52:55], 0 offen offset:8")
        e("s_sub_u32 s50, s61, s60")
        e("v_mov_b32 v251, s50")
        e("buffer_atomic_umax v251, v250, s[52:55], 0 offen offset:12")
        e("s_lshl_b32 s50, s2, 3")
        e("s_add_u32 s50, s50, s%d" % S_WAVE)
        e("s_cmp_lg_u32 s50, 800")
        e("s_cbranch_scc1 L_dbgx%d" % em.nlab)
        for k in range(3, 15):
            e("s_sub_u32 s50, s%d, s62" % (60 + k))
            e("v_mov_b32 v251, s50")
            e("buffer_store_dword v251, v250, s[52:55], 0 offen offset:%d" % (4 * (k + 1)))
        em.label("L_dbgx%d" % em.nlab)
        em.nlab += 1
        return
    e("s_mov_b32 s52, s46")
    e("s_mov_b32 s53, s47")
    e("s_mov_b32 s54, 0x100000")
    e("s_mov_b32 s55, 0x00020000")
    e("s_lshl_b32 s50, s2, 3")
    e("s_add_u32 s50, s50, s%d" % S_WAVE)
    e("s_lshl_b32 s50, s50, 6")
    e("s_mov_b64 exec, 1")
    e("v_mov_b32 v250, 0")
    for k in range(16):
        e("v_mov_b32 v251, s%d" % (60 + k))
        e("buffer_store_dword v251, v250, s[52:55], s50 offen offset:%d" % (4 * k))


def gate_tile(em, j, zreg, P, role):
    T = BREG
    for a01 in range(2):
        f = acc(a01, j)
        g = acc(2 + a01, j)
        t1 = [T + 0 + r for r in range(4)]
        t2 = [T + 4 + r for r in range(4)]
        d1 = [T + 8 + r for r in range(4)]
        zz = [T + 12 + r for r in range(4)]

        def mix(d, sc, r):
            return "v_fma_mix_f32 v%d, s%d, v%d, 0 op_sel:[0,%d,0] op_sel_hi:[0,1,0]" % (d, sc, P + 2 * a01 + (r >> 1), r & 1)

        def muls(ro):
            if ro == 0:
                return ["v_mul_f32 v%d, s%d, v%d" % (t1[r], S_C1, f + r) for r in range(4)] + [mix(t2[r], S_C2, r) for r in range(4)]
            return [mix(t1[r], S_C1, r) for r in range(4)] + ["v_mul_f32 v%d, s%d, v%d" % (t2[r], S_C2, g + r) for r in range(4)]
        role(muls, None)
        for r in range(4):
            em.e("v_min_f32 v%d, s%d, v%d" % (t1[r], S_CL, t1[r]))
        for r in range(4):
            em.e("v_exp_f32 v%d, v%d" % (t2[r], t2[r]))
        for r in range(4):
            em.e("v_exp_f32 v%d, v%d" % (t1[r], t1[r]))
        em.e("s_nop 0")
        for r in range(4):
            em.e("v_add_f32 v%d, 1.0, v%d" % (d1[r], t1[r]))
        for r in range(4):
            em.e("v_fma_f32 v%d, v%d, v%d, v%d" % (d1[r], d1[r], t2[r], d1[r]))
        for r in range(4):
            em.e("v_rcp_f32 v%d, v%d" % (d1[r], d1[r]))
        for r in range(4):
            em.e("v_sub_f32 v%d, 1.0, v%d" % (t1[r], t1[r]))
        for r in range(4):
            em.e("v_mul_f32 v%d, v%d, v%d" % (zz[r], t1[r], d1[r]))
        em.e("v_cvt_pk_bf16_f32 v%d, v%d, v%d" % (zreg + 2 * a01, zz[0], zz[1]))
        em.e("v_cvt_pk_bf16_f32 v%d, v%d, v%d" % (zreg + 2 * a01 + 1, zz[2], zz[3]))


def build(opts):
    em = Em()
    e = em.e
    GR = [int(v) for v in str(opts.get("gr", "0,16")).split(",")]
    GD = [int(v) for v in str(opts.get("gd", "7,9,23,25")).split(",")]
    XL = int(opts.get("xl", 2))
    XR = [int(v) for v in str(opts.get("xr", "0,1,2,3,4")).split(",")]
    XG = [int(v) for v in str(opts.get("xg", "2,2,2,2,2")).split(",")]
    RS = int(opts.get("rs", 7))
    assert RS >= max(XR) + 3 or (RS == max(XR) + 2)
    e("s_cmp_ge_u32 s2, 250")
    e("s_cbranch_scc1 L_end")
    e("s_load_dwordx4 s[4:7], s[0:1], 0")
    e("s_load_dwordx4 s[8:11], s[0:1], 16")
    if opts.get("stamp"):
        e("s_load_dwordx2 s[46:47], s[0:1], 40")
        for k in range(16):
            e("s_mov_b32 s%d, 0" % (60 + k))
        e("s_memrealtime s[58:59]")
        e("%s s[50:51]" % ("s_memrealtime" if opts.get("rt") else "s_memtime"))
    e("v_and_b32 v0, 0x3ff, v0")
    e("v_lshrrev_b32 v1, 6, v0")
    CPF = int(opts.get("cpf", 0))
    if CPF:
        e("s_getpc_b64 s[98:99]")
        em.label("L_pc")
        e("v_and_b32 v2, 1, v0")
        e("v_lshlrev_b32 v2, 7, v2")
        e("v_lshl_add_u32 v2, v1, 8, v2")
        e("s_lshr_b32 s36, s2, 3")
        e("s_lshl_b32 s36, s36, 10")
        e("s_add_u32 s36, s36, 2048")
        e("v_lshl_add_u32 v3, v1, 7, s36")
        e("v_and_b32 v4, 32, v0")
        e("v_cmp_eq_u32 vcc, 0, v4")
        e("v_cndmask_b32 v2, v3, v2, vcc")
        e("v_min_u32 v2, L_end-L_pc, v2")
        e("global_load_dword v%d, v2, s[98:99]" % V_DUMMY)
    e("v_and_b32 v%d, 63, v0" % V_LANE)
    e("v_readfirstlane_b32 s%d, v1" % S_WAVE)
    L = V_LANE
    e("v_lshrrev_b32 v5, 3, v%d" % L)
    e("v_lshlrev_b32 v5, 9, v5")
    e("v_and_b32 v6, 7, v%d" % L)
    e("v_lshl_add_u32 v%d, v6, 4, v5" % V_XD)
    e("s_lshl_b32 s%d, s2, 16" % S_G0)
    e("s_cmp_eq_u32 s2, 0")
    e("s_cselect_b32 s%d, 1, 0" % S_T3)
    e("s_cmp_eq_u32 s2, 125")
    e("s_cselect_b32 s%d, 1, s%d" % (S_T3, S_T3))
    e("s_and_b32 s%d, s%d, 3" % (S_T2, S_WAVE))
    e("s_cmp_eq_u32 s%d, 0" % S_T2)
    e("s_cselect_b32 s%d, s%d, 0" % (S_T3, S_T3))
    e("s_mul_i32 s%d, s%d, %d" % (S_XM, S_T2, PIECE))
    e("s_lshl_b32 s%d, s%d, 12" % (S_XS, S_T2))
    e("s_add_u32 s%d, s%d, s%d" % (S_XS, S_XS, S_G0))
    e("s_sub_u32 s%d, s%d, 4096" % (S_XS, S_XS))
    e("s_lshr_b32 s%d, s%d, 2" % (S_ISL, S_WAVE))
    e("v_lshrrev_b32 v1, 5, v%d" % L)
    e("v_bfe_u32 v2, v%d, 3, 2" % L)
    e("v_lshlrev_b32 v5, 13, v1")
    e("v_lshl_add_u32 v5, v2, 10, v5")
    e("v_lshrrev_b32 v1, 4, v%d" % L)
    e("v_lshlrev_b32 v6, 1, v1")
    e("v_and_b32 v3, 7, v%d" % L)
    e("v_xor_b32 v6, v6, v3")
    e("v_lshl_add_u32 v5, v6, 4, v5")
    e("s_lshr_b32 s%d, s%d, 1" % (S_T0, S_WAVE))
    e("s_lshl_b32 s%d, s%d, 7" % (S_T0, S_T0))
    e("s_and_b32 s%d, s%d, 1" % (S_T1, S_WAVE))
    e("s_lshl_b32 s%d, s%d, 9" % (S_T1, S_T1))
    e("s_add_u32 s%d, s%d, s%d" % (S_T0, S_T0, S_T1))
    e("v_add_u32 v%d, s%d, v5" % (V_WD0, S_T0))
    e("v_add_u32 v%d, 0x4000, v%d" % (V_WD1, V_WD0))
    e("v_add_u32 v%d, 0x1000, v%d" % (V_WD2, V_WD0))
    e("v_add_u32 v%d, 0x5000, v%d" % (V_WD3, V_WD0))
    e("v_bfe_u32 v2, v%d, 2, 2" % L)
    e("v_and_b32 v3, 3, v%d" % L)
    e("v_and_b32 v4, 1, v1")
    e("s_lshl_b32 s%d, s%d, 13" % (S_RING, S_WAVE))
    e("s_add_u32 s%d, s%d, %d" % (S_RING, S_RING, RING0))
    for (sr, p, nbytes) in ((S_X, 4, 16384000), (S_X0, 4, 16384000), (S_W, 6, 1310720), (S_WO, 8, 131072), (S_OUT, 10, 16384000)):
        e("s_mov_b32 s%d, %d" % (sr + 2, nbytes))
        e("s_mov_b32 s%d, 0x00020000" % (sr + 3))
    e("s_cmp_eq_u32 s%d, 1" % S_T3)
    e("s_cselect_b32 s%d, 0, s%d" % (S_X0 + 2, S_X0 + 2))
    e("s_waitcnt lgkmcnt(0)")
    if opts.get("stamp"):
        e("s_mov_b32 s60, s58")
        e("s_mov_b32 s62, s50")
    pstamp(em, opts, 11)
    for (sr, p) in ((S_X, 4), (S_X0, 4), (S_W, 6), (S_WO, 8), (S_OUT, 10)):
        e("s_mov_b64 s[%d:%d], s[%d:%d]" % (sr, sr + 1, p, p + 1))

    def xpiece(i):
        return [("op", "s_add_u32 m0, s%d, %d" % (S_XM, 4 * i * PIECE)),
                ("op", "s_add_u32 s%d, s%d, %d" % (S_T2, S_XS, 4 * i * 4096)),
                ("op", "buffer_load_dwordx4 v%d, %s, s%d offen lds" % (V_XD, srd(S_X0 if i == 0 else S_X), S_T2))]

    def soff_const(step):
        it, rel = divmod(step, 10)
        kh, tap = divmod(rel, 5)
        return it, tap * 262144 + kh * 32768

    def dma_items(step, u):
        slot = (4 * step + u) % NRING
        m0 = ("op", "s_add_u32 m0, s%d, %d" % (S_RING, slot * 1024))
        d = ("vm", "buffer_load_dwordx4 v%d, %s, s%d offen lds" % (V_WDS[u], srd(S_W), S_SOFF), ("u", step, u))
        return m0, d

    def tr_items(step, h):
        slot = (4 * step + 2 * h) % NRING
        ab = AREG + 16 * (step % 2)
        out = [("wvm", ("u", step, 2 * h + 1))]
        for a in range(4):
            d = ab + 4 * a + 2 * h
            out.append(("lg", "ds_read_b64_tr_b16 %s, v%d offset:%d" % (vr(d, 2), V_AS[a], slot * 1024), ("a", step, h, a)))
        return out

    def ring_fill(st, track=True):
        e("s_mov_b32 s%d, %d" % (S_SOFF, soff_const(st)[1]))
        for u in range(4):
            m0, d = dma_items(st, u)
            em.item(m0)
            e("s_nop 0")
            if track:
                em.item(d)
            else:
                e(d[1])

    LPRE = int(opts.get("lpre", 1))
    XPW = int(opts.get("xpw", 0))
    e("s_lshr_b32 s%d, s2, 3" % S_I)
    e("s_cmp_eq_u32 s%d, 0" % S_ISL)
    e("s_cbranch_scc1 L_hpro")
    for i in range(4):
        for it in xpiece(i):
            em.item(it)
    e("s_cmp_lg_u32 s%d, 4" % S_WAVE)
    e("s_cbranch_scc1 L_ppro")
    for it in xpiece(4):
        em.item(it)
    e("s_branch L_ppro")
    em.label("L_hpro")
    ring_fill(0)
    ring_fill(1)
    em.label("L_ppro")
    pstamp(em, opts, 12)
    e("s_and_b32 s%d, s%d, 3" % (S_T2, S_WAVE))
    SPF = str(opts.get("spf", ""))
    if SPF:
        e("s_and_b32 s%d, s%d, 1" % (S_T0, S_T2))
        e("s_lshl_b32 s%d, s%d, 7" % (S_T0, S_T0))
        e("s_lshr_b32 s%d, s%d, 1" % (S_T1, S_T2))
        e("s_lshl_b32 s%d, s%d, 9" % (S_T1, S_T1))
        e("s_add_u32 s%d, s%d, s%d" % (S_T0, S_T0, S_T1))
        e("s_lshl_b32 s%d, s%d, 8" % (S_T1, S_ISL))
        e("s_add_u32 s%d, s%d, s%d" % (S_T0, S_T0, S_T1))
        e("s_lshl_b32 s%d, s%d, 10" % (S_P0, S_I))
        e("s_add_u32 s%d, s%d, s%d" % (S_P0, S_P0, S_T0))
        e("s_add_u32 s%d, s%d, %d" % (S_P1, S_P0, 229376))
        e("s_add_u32 s%d, s%d, %d" % (S_P2, S_P0, 1048576))
        q0, q1 = [int(v) for v in SPF.split("-")]
        for q in range(q0, q1):
            cs, tap = divmod(q, 5)
            c1 = tap * 262144 + cs * 32768 - q * 1024
            e("s_cmp_ge_u32 s%d, %d" % (S_I, q))
            if tap:
                imm = c1 - 229376
                e("s_cselect_b32 s%d, s%d, s%d" % (S_T0, S_P1, S_P0))
            else:
                imm = c1
                e("s_cselect_b32 s%d, s%d, s%d" % (S_T0, S_P0, S_P2))
            assert imm >= 0
            e("s_buffer_load_dword s%d, %s, s%d offset:%d" % (S_PD, srd(S_W), S_T0, imm))
    pstamp(em, opts, 13)
    e("s_add_u32 s%d, s%d, 1" % (S_T0, S_ISL))
    e("s_mul_i32 s%d, s%d, %d" % (S_T1, S_T0, CHUNK))
    e("s_add_u32 s%d, s%d, s%d" % (S_XM, S_XM, S_T1))
    e("s_lshl_b32 s%d, s%d, 7" % (S_T1, S_T0))
    e("s_add_u32 s%d, s%d, s%d" % (S_XS, S_XS, S_T1))
    e("s_lshl_b32 s%d, s%d, 2" % (S_T1, S_T0))
    e("s_add_u32 s%d, s%d, %d" % (S_T1, S_T1, FLG + F_X))
    e("v_mov_b32 v%d, s%d" % (V_SG, S_T1))
    e("s_mov_b32 s%d, 1" % S_HOOK)
    e("s_cmp_eq_u32 s%d, 0" % S_T2)
    e("s_cselect_b32 s%d, 1, 0" % S_HOOK2)
    XPF = int(opts.get("xpf", 0))
    if XPF:
        e("s_mul_i32 s%d, s%d, %d" % (S_T0, S_T2, 34 * 512))
        e("s_add_u32 s%d, s%d, s%d" % (S_T0, S_T0, S_G0))
        e("s_sub_u32 s%d, s%d, %d" % (S_T0, S_T0, 4096 - 128))
        for k, dst in ((0, V_PFA), (1, V_PFB)):
            e("v_add_u32 v5, %d, v%d" % (64 * k, L))
            e("v_mul_u32_u24 v6, 0x788, v5")
            e("v_lshrrev_b32 v6, 16, v6")
            e("v_mul_u32_u24 v7, 34, v6")
            e("v_sub_u32 v7, v5, v7")
            e("v_lshlrev_b32 v7, 9, v7")
            e("v_lshl_add_u32 v7, v6, 7, v7")
            e("v_add_u32 v7, s%d, v7" % S_T0)
            e("v_max_i32 v7, 0, v7")
            e("v_cmp_gt_u32 vcc, 102, v5")
            e("v_mov_b32 v6, 0x7fffff00")
            e("v_cndmask_b32 v%d, v6, v7, vcc" % dst)

    def xprefetch():
        n = 0
        for v in (V_PFA, V_PFB):
            for hh in range(XPF):
                e("buffer_load_dword v%d, v%d, %s, 0 offen offset:%d" % (V_DUMMY, v, srd(S_X), 64 * hh))
                n += 1
        return n
    e("s_lshl_b32 s%d, s%d, 13" % (S_T0, S_I))
    e("v_lshlrev_b32 v5, 7, v%d" % L)
    e("v_add_u32 v%d, s%d, v5" % (V_PFC, S_T0))
    if int(opts.get("opf", 0)) & 1:
        e("v_and_b32 v5, 3, v%d" % L)
        e("s_lshl_b32 s%d, s%d, 14" % (S_T0, S_T2))
        e("v_lshl_add_u32 v%d, v5, 12, s%d" % (V_PFA, S_T0))
    WPF = int(opts.get("wpf", -1))
    if WPF >= 0:
        WQ0 = int(opts.get("wq0", 14))
        e("s_add_u32 s%d, s%d, %d" % (S_T0, S_I, WQ0))
        e("s_mul_i32 s%d, s%d, 52" % (S_T1, S_T0))
        e("s_lshr_b32 s%d, s%d, 8" % (S_T1, S_T1))
        e("s_mul_i32 s%d, s%d, 5" % (S_T3, S_T1))
        e("s_sub_u32 s%d, s%d, s%d" % (S_T3, S_T0, S_T3))
        e("s_lshl_b32 s%d, s%d, 18" % (S_T3, S_T3))
        e("s_lshl_b32 s%d, s%d, 15" % (S_T1, S_T1))
        e("s_add_u32 s%d, s%d, s%d" % (S_T3, S_T3, S_T1))
        e("s_sub_u32 s%d, s%d, 40" % (S_T1, S_T0))
        e("s_lshl_b32 s%d, s%d, 15" % (S_T1, S_T1))
        e("s_cmp_lt_u32 s%d, 40" % S_T0)
        e("s_cselect_b32 s%d, s%d, s%d" % (S_T3, S_T3, S_T1))
        e("s_cselect_b32 s%d, 1, 2" % S_WPF)
        e("s_lshl_b32 s%d, s%d, 12" % (S_T1, S_WAVE))
        e("s_add_u32 s%d, s%d, s%d" % (S_T3, S_T3, S_T1))
        e("v_and_b32 v5, 31, v%d" % L)
        e("v_lshl_add_u32 v%d, v5, 7, s%d" % (V_PFB, S_T3))
    e("s_mov_b32 s%d, 0x%08x" % (S_C1, f32bits(-2.0 * 1.4426950408889634)))
    e("s_mov_b32 s%d, 0x%08x" % (S_C2, f32bits(-1.4426950408889634)))
    e("s_mov_b32 s%d, 0x%08x" % (S_CL, f32bits(30.0)))
    e("v_lshlrev_b32 v5, 9, v1")
    e("v_lshl_add_u32 v5, v2, 7, v5")
    e("v_lshl_add_u32 v6, v4, 6, v5")
    e("v_lshrrev_b32 v7, 1, v2")
    e("v_lshl_add_u32 v6, v7, 5, v6")
    e("v_lshl_add_u32 v6, v3, 3, v6")
    for a in range(4):
        if a:
            e("v_xor_b32 v7, %d, v6" % (32 * a))
            e("v_add_u32 v%d, s%d, v7" % (V_AS[a], S_RING))
        else:
            e("v_add_u32 v%d, s%d, v6" % (V_AS[a], S_RING))
    e("v_lshrrev_b32 v5, 1, v5")
    e("s_and_b32 s%d, s%d, 3" % (S_T2, S_WAVE))
    e("s_mul_i32 s%d, s%d, %d" % (S_WOR, S_T2, NWO * 1024))
    e("s_add_u32 s%d, s%d, %d" % (S_WOR, S_WOR, WOB))
    e("v_lshl_add_u32 v6, v3, 4, v5")
    e("v_add_u32 v%d, s%d, v6" % (V_OA, S_WOR))
    e("v_lshrrev_b32 v6, 2, v%d" % L)
    e("v_lshlrev_b32 v6, 9, v6")
    e("v_lshl_add_u32 v6, v3, 4, v6")
    e("s_lshl_b32 s%d, s%d, 7" % (S_T2, S_T2))
    e("v_add_u32 v%d, s%d, v6" % (V_WOD, S_T2))
    e("v_and_b32 v7, 15, v%d" % L)
    e("s_mov_b32 s%d, %d" % (S_T1, PIECE))
    e("v_mul_lo_u32 v5, v7, s%d" % S_T1)
    e("v_lshl_add_u32 v%d, v1, 4, v5" % V_X)
    if int(opts.get("fl", 0)):
        e("v_and_b32 v5, 7, v7")
        e("v_lshlrev_b32 v5, 12, v5")
        e("v_lshrrev_b32 v7, 3, v7")
        e("v_lshl_add_u32 v5, v7, 6, v5")
    else:
        e("v_lshlrev_b32 v5, 12, v7")
    e("v_lshl_add_u32 v5, v1, 4, v5")
    e("v_add_u32 v%d, s%d, v5" % (V_OUT, S_T2))
    e("v_lshlrev_b32 v5, 4, v%d" % L)
    e("v_add_u32 v%d, %d, v5" % (V_Z, RING0))
    e("v_add_u32 v%d, s%d, v5" % (V_ZW, S_RING))
    e("v_mov_b32 v%d, %d" % (V_FA, FLG))
    e("v_mov_b32 v%d, %d" % (V_FL, FLG + F_X + 4))
    e("v_mov_b32 v%d, 1" % V_ONE)
    e("s_cmp_lg_u32 s%d, 4" % S_WAVE)
    e("s_cbranch_scc1 L_nofl")
    e("v_lshlrev_b32 v5, 2, v%d" % L)
    e("v_add_u32 v5, %d, v5" % FLG)
    e("v_cmp_eq_u32 vcc, 4, v%d" % L)
    e("v_mov_b32 v6, 0")
    e("s_nop 0")
    e("v_cndmask_b32 v6, v6, v%d, vcc" % L)
    e("ds_write_b32 v5, v6")
    em.label("L_nofl")
    e("s_lshl_b32 s%d, s%d, 2" % (S_T0, S_WAVE))
    e("s_add_u32 s%d, s%d, %d" % (S_T0, S_T0, FLG + F_E))
    e("v_mov_b32 v%d, s%d" % (V_EP, S_T0))
    e("s_and_b32 vcc_lo, s%d, 1" % S_WAVE)
    e("s_mov_b32 vcc_hi, 0")
    for r in range(128):
        e("v_mov_b32 v%d, 0" % (ACC + r))
    e("s_mov_b32 s%d, 0" % S_IT)
    e("s_mov_b32 s%d, 0" % S_CNT)
    pstamp(em, opts, 14)

    def soff_item(step, cur):
        it, c = soff_const(step)
        return ("op", "s_add_u32 s%d, s%d, %d" % (S_SOFF, S_IT, c + (it - cur) * 65536))

    def cold_a():
        em.item(soff_item(2, 0))
        for h in range(2):
            for it in tr_items(0, h):
                em.item(it)
        for u in range(4):
            m0, d = dma_items(2, u)
            em.item(m0)
            em.wait_lg(("a", 0, u >> 1, 3))
            e("s_nop 0")
            em.item(d)

    e("s_setprio 3")
    e("s_cmp_eq_u32 s%d, 0" % S_ISL)
    e("s_cbranch_scc1 L_hw")
    for st in range(LPRE):
        ring_fill(st, False)
    npf = xprefetch() if XPW == 0 else 0
    e("s_waitcnt vmcnt(%d) lgkmcnt(0)" % (4 * LPRE + npf))
    e("s_barrier")
    for st in range(LPRE, 2):
        ring_fill(st, False)
    if XPW == 1:
        xprefetch()
    sv = (list(em.vm), list(em.lg))
    cold_a()
    em.vm, em.lg = sv
    if XPW == 2:
        xprefetch()
    e("s_branch L_bar")
    em.label("L_hw")
    cold_a()
    pstamp(em, opts, 15)
    e("s_barrier")
    em.label("L_bar")
    stamp(em, opts, 3)
    pcollect(em, opts)

    slotkey = [None] * 8

    def bkey(step, j):
        cs, tap = divmod(step, 5)
        sidx = j - 2 * tap + 8
        return sidx & 7, (cs, sidx)

    def bread(step, j):
        slot, key = bkey(step, j)
        if slotkey[slot] == key:
            return None
        slotkey[slot] = key
        cs, tap = divmod(step, 5)
        sidx = j - 2 * tap + 8
        off = (sidx >> 3) * PIECE + (sidx & 7) * 128 + (cs & 1) * 64
        return ("lg", "ds_read_b128 %s, v%d offset:%d" % (vr(BREG + 4 * slot, 4), V_X, off), ("b", key))

    for j in range(7, -1, -1):
        em.item(bread(0, j))
    if int(opts.get("order", 0)) in (0, 2):
        e("s_waitcnt lgkmcnt(6)")
        em.lg = em.lg[-6:]
    else:
        e("s_waitcnt lgkmcnt(0)")
        em.lg = []
    stamp(em, opts, 4)

    def hook(items, lab):
        return [("op", "s_cmp_eq_u32 s%d, 0" % S_HOOK), ("op", "s_cbranch_scc1 %s" % lab)] + items + [("lab", lab)]

    def signal(c):
        return [("op", "ds_add_u32 v%d, v%d offset:%d" % (V_FA, V_ONE, F_X + 4 * c))]

    def gstep(step):
        rel = step % 10
        cur = step // 10
        ab = AREG + 16 * (step % 2)
        gaps = [[] for _ in range(33)]
        gaps[0].append(soff_item(step + 3, cur))
        if rel == 7:
            gaps[0].append(("op", "s_cmp_eq_u32 s%d, 3" % S_CNT))
            gaps[0].append(("op", "s_cselect_b32 s%d, 0, s%d" % (S_W + 2, S_W + 2)))
        for h in range(2):
            for it in tr_items(step + 1, h):
                gaps[GR[h]].append(it)
        for u in range(4):
            m0, d = dma_items(step + 3, u)
            gaps[GD[u] - 1].append(m0)
            gaps[GD[u]].append(("wlg", ("a", step + 1, u >> 1, 3)))
            gaps[GD[u]].append(d)
        sig = [("op", "s_mov_b64 exec, 1"),
               ("op", "ds_add_u32 v%d, v%d" % (V_SG, V_ONE)),
               ("op", "s_mov_b64 exec, -1")]
        for i in range(5):
            if XR[i] == rel and not opts.get("nox"):
                lab = "L_hx%d" % i
                gaps[XG[i]] += [("op", "s_cmp_eq_u32 s%d, 0" % (S_HOOK2 if i == 4 else S_HOOK)), ("op", "s_cbranch_scc1 %s" % lab)] + xpiece(i) + [("lab", lab)]
        if rel == RS:
            gaps[2] += hook(sig, "L_hsig")
        if rel == WPF:
            gaps[11] += [("op", "s_cmp_eq_u32 s%d, 0" % S_WPF), ("op", "s_cbranch_scc1 L_nwpf"),
                         ("op", "s_cmp_eq_u32 s%d, 1" % S_WPF), ("op", "s_mov_b32 s%d, 0" % S_WPF), ("op", "s_cbranch_scc0 L_wpf2"),
                         ("op", "buffer_load_dword v%d, v%d, %s, 0 offen" % (V_DUMMY, V_PFB, srd(S_W))),
                         ("op", "s_branch L_nwpf"), ("lab", "L_wpf2"),
                         ("op", "buffer_load_dword v%d, v%d, %s, 0 offen" % (V_DUMMY, V_PFB, srd(S_WO))),
                         ("lab", "L_nwpf")]
        if rel == 8:
            gaps[10].append(("lg", "ds_read_b32 v%d, v%d" % (V_F, V_FL), ("fl", step)))
        pre = []
        if rel == 9:
            pre = [("wlg", ("fl", step - 1)),
                   ("op", "v_readfirstlane_b32 s%d, v%d" % (S_T0, V_F)),
                   ("op", "v_add_u32 v%d, %d, v%d" % (V_X, CHUNK, V_X)),
                   ("op", "s_cmp_eq_u32 s%d, 4" % S_T0),
                   ("op", "s_cbranch_scc1 L_pok"),
                   ("lab", "L_pspin"),
                   ("op", "ds_read_b32 v%d, v%d" % (V_F, V_FL)),
                   ("op", "s_waitcnt lgkmcnt(0)"),
                   ("op", "v_readfirstlane_b32 s%d, v%d" % (S_T0, V_F)),
                   ("op", "s_cmp_eq_u32 s%d, 4" % S_T0),
                   ("op", "s_cbranch_scc0 L_pspin"),
                   ("lab", "L_pok"),
                   ("op", "v_add_u32 v%d, 4, v%d" % (V_FL, V_FL))]
        for it in pre:
            em.item(it)
        nxt = step + 1
        pending = {}
        for j2 in range(8):
            slot, key = bkey(nxt, j2)
            pending[slot] = j2
        k = 0
        ORD = int(opts.get("order", 0))
        if ORD == 0:
            seq = [(j, a) for j in range(7, -1, -1) for a in range(4)]
        elif ORD == 1:
            seq = [(j, a) for a in range(4) for j in range(7, -1, -1)]
        elif ORD == 2:
            seq = [(j, (a if (j & 1) else 3 - a)) for j in range(7, -1, -1) for a in range(4)]
        elif ORD == 3:
            seq = [(j, 2 * ah + a) for ah in range(2) for j in range(7, -1, -1) for a in range(2)]
        last = {}
        for idx, (j, a) in enumerate(seq):
            last[j] = idx
        for idx, (j, a) in enumerate(seq):
            slot, key = bkey(step, j)
            em.wait_lg(("b", key))
            em.wait_lg(("a", step, 1, a))
            em.e("v_mfma_f32_16x16x32_bf16 %s, %s, %s, %s" % (
                vr(acc(a, j), 4), vr(ab + 4 * a, 4), vr(BREG + 4 * slot, 4), vr(acc(a, j), 4)))
            if last[j] == idx and slot in pending:
                it = bread(nxt, pending[slot])
                if it:
                    em.item(it)
            for it in gaps[k]:
                em.item(it)
            k += 1

    def role(fn, tag=None):
        n = em.nlab
        em.nlab += 1
        e("s_cbranch_vccnz L_ro%d" % n)
        for k, l in enumerate(fn(0)):
            if l.startswith("ds_"):
                em.lgop(l, (tag, k))
            else:
                e(l)
        e("s_branch L_re%d" % n)
        em.label("L_ro%d" % n)
        for l in fn(1):
            e(l)
        em.label("L_re%d" % n)

    def xsend(j):
        tp = 192 + 4 * (j & 1)
        role(lambda r: ["v_cvt_pk_f16_f32 v%d, v%d, v%d" % (tp + i, acc(2 - 2 * r, j) + 2 * i, acc(2 - 2 * r, j) + 2 * i + 1) for i in range(4)], None)
        em.lgop("ds_write_b128 v%d, %s offset:%d" % (V_ZW, vr(tp, 4), j * 1024), ("xs", j))

    def last_step(step):
        ab = AREG + 16 * (step % 2)
        for j in range(7, -1, -1):
            slot, key = bkey(step, j)
            for a in range(4):
                em.wait_lg(("b", key))
                em.wait_lg(("a", step, 1, a))
                em.e("v_mfma_f32_16x16x32_bf16 %s, %s, %s, %s" % (
                    vr(acc(a, j), 4), vr(ab + 4 * a, 4), vr(BREG + 4 * slot, 4), vr(acc(a, j), 4)))
            if j == 6:
                e("s_waitcnt vmcnt(0)")
                em.vm = []
            if j < 7:
                xsend(j + 1)
        e("s_nop 7")
        e("s_nop 7")
        xsend(0)
        e("s_mov_b64 exec, 1")
        em.lgop("ds_write_b32 v%d, v%d" % (V_EP, V_ONE), ("xf",))
        e("s_mov_b64 exec, -1")

    def last_step2(step):
        ab = AREG + 16 * (step % 2)
        st0 = (list(em.vm), list(em.lg))
        e("s_cbranch_vccnz L_ls1")
        for r in range(2):
            em.vm, em.lg = list(st0[0]), list(st0[1])
            if r:
                em.label("L_ls1")
            order = (2, 3, 0, 1) if r == 0 else (0, 1, 2, 3)

            def cv(j, i):
                e("v_cvt_pk_f16_f32 v%d, v%d, v%d" % (192 + 4 * (j & 1) + i, acc(2 - 2 * r, j) + 2 * i, acc(2 - 2 * r, j) + 2 * i + 1))

            def wr(j):
                em.lgop("ds_write_b128 v%d, %s offset:%d" % (V_ZW, vr(192 + 4 * (j & 1), 4), j * 1024), ("xs", j))
            for j in range(7, -1, -1):
                slot, key = bkey(step, j)
                for k, a in enumerate(order):
                    em.wait_lg(("b", key))
                    em.wait_lg(("a", step, 1, a))
                    em.e("v_mfma_f32_16x16x32_bf16 %s, %s, %s, %s" % (
                        vr(acc(a, j), 4), vr(ab + 4 * a, 4), vr(BREG + 4 * slot, 4), vr(acc(a, j), 4)))
                    if j < 7 and k < 2:
                        cv(j + 1, 2 * k)
                        cv(j + 1, 2 * k + 1)
                    if j < 7 and k == 2:
                        if j == 6:
                            e("s_waitcnt vmcnt(0)")
                            em.vm = []
                        wr(j + 1)
            e("s_nop 7")
            for i in range(4):
                cv(0, i)
            wr(0)
            e("s_mov_b64 exec, 1")
            em.lgop("ds_write_b32 v%d, v%d" % (V_EP, V_ONE), ("xf",))
            e("s_mov_b64 exec, -1")
            if r == 0:
                e("s_branch L_ls2")
        em.label("L_ls2")

    start = len(em.lines)
    for s in range(0, 10):
        gstep(s)
        if s == 8:
            e("s_cmp_eq_u32 s%d, 3" % S_CNT)
            e("s_cbranch_scc1 L_last")
    mid = len(em.lines)
    for s in range(10, 20):
        gstep(s)
        if s == 18:
            e("s_cmp_eq_u32 s%d, 3" % S_CNT)
            e("s_cbranch_scc1 L_last")
            snap = (list(em.vm), list(em.lg))
    end = len(em.lines)
    b1 = em.lines[start:mid]
    b2 = em.lines[mid:end]
    if b1 != b2:
        import difflib
        for l in difflib.unified_diff(b1, b2, lineterm="", n=0):
            print("DIFF", l)
    b1 = b2
    em.lines = em.lines[:start]
    if opts.get("nodma"):
        b1 = [l for l in b1 if not ("s[16:19]" in l) and "vmcnt" not in l]
    if opts.get("nomfma"):
        b1 = [l for l in b1 if "v_mfma" not in l]
    em.label("L_loop")
    em.lines += b1
    if opts.get("stamp") == 2:
        e("s_memtime s[80:81]")
        e("s_mov_b32 s71, s72")
        e("s_mov_b32 s72, s73")
        e("s_mov_b32 s73, s74")
        e("s_waitcnt lgkmcnt(0)")
        e("s_mov_b32 s74, s80")
    e("s_add_u32 s%d, s%d, 65536" % (S_IT, S_IT))
    e("s_add_u32 s%d, s%d, 1" % (S_CNT, S_CNT))
    e("s_add_u32 s%d, s%d, %d" % (S_XM, S_XM, CHUNK))
    e("s_add_u32 s%d, s%d, 128" % (S_XS, S_XS))
    e("v_add_u32 v%d, 4, v%d" % (V_SG, V_SG))
    e("s_cmp_gt_u32 s%d, s%d" % (S_CNT, S_ISL))
    e("s_cselect_b32 s%d, 0, s%d" % (S_HOOK, S_HOOK))
    e("s_cselect_b32 s%d, 0, s%d" % (S_HOOK2, S_HOOK2))
    e("s_mul_i32 s%d, s%d, %d" % (S_T0, S_ISL, XL - 1))
    e("s_add_u32 s%d, s%d, 1" % (S_T0, S_T0))
    e("s_cmp_lg_u32 s%d, s%d" % (S_T0, S_CNT))
    e("s_cbranch_scc1 L_nsp")
    e("s_setprio 1")
    e("s_cmp_lg_u32 s%d, 0" % S_ISL)
    e("s_cbranch_scc1 L_nsp")
    e("s_setprio 2")
    OPF = int(opts.get("opf", 0))
    if OPF & 1:
        e("buffer_load_dword v%d, v%d, %s, s%d offen" % (V_DUMMY, V_PFA, srd(S_OUT), S_G0))
    if OPF & 2:
        e("s_cmp_lg_u32 s%d, 0" % S_WAVE)
        e("s_cbranch_scc1 L_nsp")
        e("buffer_load_dword v%d, v%d, %s, 0 offen" % (V_DUMMY, V_PFC, srd(S_WO)))
    em.label("L_nsp")
    e("s_branch L_loop")
    em.label("L_last")
    em.vm, em.lg = snap
    if opts.get("st4"):
        stamp(em, opts, 4)
    (last_step2 if opts.get("ls2") else last_step)(19)
    stamp(em, opts, 5)
    V_ZP = V_WD0
    e("s_and_b32 s%d, s%d, 1" % (S_T1, S_WAVE))
    e("s_lshl_b32 s%d, s%d, 14" % (S_T0, S_T1))
    e("s_sub_u32 s%d, 8192, s%d" % (S_T0, S_T0))
    e("v_add_u32 v%d, s%d, v%d" % (V_ZP, S_T0, V_ZW))
    e("v_xor_b32 v%d, 4, v%d" % (V_EP, V_EP))

    def preg(j):
        return 240 + 4 * (j & 1) + 8

    def xrecv(j):
        em.lgop("ds_read_b128 %s, v%d offset:%d" % (vr(preg(j), 4), V_ZP, j * 1024), ("xr", j))

    def poll(lab, va, off, val):
        em.label(lab)
        e("ds_read_b32 v%d, v%d offset:%d" % (V_F, va, off))
        e("s_waitcnt lgkmcnt(0)")
        em.lg = []
        e("v_readfirstlane_b32 s%d, v%d" % (S_T0, V_F))
        e("s_cmp_eq_u32 s%d, %d" % (S_T0, val))
        e("s_cbranch_scc0 %s" % lab)
    e("s_cmp_lg_u32 s%d, 0" % S_ISL)
    e("s_cbranch_scc1 L_low")
    vm_after_loop = list(em.vm)

    e("s_setprio 0")

    def wo_dma(U):
        ks, u = divmod(U, 4)
        ch, h = u >> 1, u & 1
        slot = U % NWO
        off = slot * 1024 - ch * 64
        m0 = ("op", "s_add_u32 m0, s%d, %d" % (S_WOR, off)) if off >= 0 else ("op", "s_sub_u32 m0, s%d, %d" % (S_WOR, -off))
        so = ("op", "s_mov_b32 s%d, %d" % (S_SOFF, (32 * ks + 16 * h) * 512))
        d = ("vm", "buffer_load_dwordx4 v%d, %s, s%d offen offset:%d lds" % (V_WOD, srd(S_WO), S_SOFF, ch * 64), ("o", U))
        return [m0, so, d]

    def wo_tr(U):
        ks, u = divmod(U, 4)
        ch, h = u >> 1, u & 1
        slot = U % NWO
        ab = AREG + 16 * (ks % 4)
        out = [("wvm", ("o", U))]
        for a1 in range(2):
            d = ab + 4 * (2 * ch + a1) + 2 * h
            out.append(("lg", "ds_read_b64_tr_b16 %s, v%d offset:%d" % (vr(d, 2), V_OA, slot * 1024 + a1 * 8), ("oa", U, a1)))
        return out

    for U in range(NWO):
        for it in wo_dma(U):
            em.item(it)
    nextdma = NWO
    poll("L_xph", V_EP, 0, 1)
    xrecv(7)
    for t, j in enumerate(range(7, -1, -1)):
        zreg = BREG + 16 + 4 * (t % 4)
        if j:
            xrecv(j - 1)
        em.wait_lg(("xr", j))
        gate_tile(em, j, zreg, preg(j), role)
        em.lgop("ds_write_b128 v%d, %s offset:%d" % (V_ZP, vr(zreg, 4), j * 1024), ("zw", j))
        if t >= 1:
            em.wait_lg(("oa", 2 * t - 1, 1))
            for U in (nextdma, nextdma + 1):
                for it in wo_dma(U):
                    em.item(it)
            nextdma += 2
        for U in (2 * t, 2 * t + 1):
            for it in wo_tr(U):
                em.item(it)
    e("s_mov_b64 exec, 1")
    em.lgop("ds_add_u32 v%d, v%d offset:%d" % (V_FA, V_ONE, F_ZH), ("zf",))
    e("s_mov_b64 exec, -1")
    em.wait_lg(("oa", 15, 1))
    for U in (nextdma, nextdma + 1):
        for it in wo_dma(U):
            em.item(it)
    nextdma += 2
    stamp(em, opts, 6)
    em.label("L_zhs")
    e("ds_read_b32 v%d, v%d offset:%d" % (V_F, V_FA, F_ZH))
    e("s_waitcnt lgkmcnt(0)")
    em.lg = []
    e("v_readfirstlane_b32 s%d, v%d" % (S_T0, V_F))
    e("s_cmp_eq_u32 s%d, 4" % S_T0)
    e("s_cbranch_scc0 L_zhs")
    if opts.get("hp2"):
        e("s_setprio 2")
    stamp(em, opts, 7)

    def zread(ks, j, slot):
        return ("lg", "ds_read_b128 %s, v%d offset:%d" % (vr(BREG + 4 * slot, 4), V_Z, (ks ^ 1) * 8192 + j * 1024), ("z", ks, j))

    for j in range(7, -1, -1):
        em.item(zread(0, j, j))
    for ks in range(4):
        ab = AREG + 16 * ks
        gaps = [[] for _ in range(33)]
        if ks >= 1:
            for u in range(4):
                U = 4 * (ks + 3) + u
                for it in wo_tr(U):
                    gaps[8 * u].append(it)
                if nextdma < 32:
                    gaps[8 * u + 6].append(("wlg", ("oa", U, 1)))
                    for it in wo_dma(nextdma):
                        gaps[8 * u + 6].append(it)
                    nextdma += 1
        k = 0
        for j in range(7, -1, -1):
            em.wait_lg(("z", ks, j))
            for a in range(4):
                c = "0" if ks == 0 else vr(acc(a, j), 4)
                e("v_mfma_f32_16x16x32_bf16 %s, %s, %s, %s" % (vr(acc(a, j), 4), vr(ab + 4 * a, 4), vr(BREG + 4 * j, 4), c))
                if a == 3 and ks < 3:
                    em.item(zread(ks + 1, j, j))
                for it in gaps[k]:
                    em.item(it)
                k += 1
    assert nextdma == 32, nextdma
    for u in range(4):
        for it in wo_tr(28 + u):
            em.item(it)
    stamp(em, opts, 8)

    FL = int(opts.get("fl", 0))
    SF = str(opts.get("sf", "")).replace("+", " ")

    def epi(j, t):
        if FL:
            c0 = 240 + 8 * (t % 2)
            c1 = c0 + 4
            tp = 224
            for ch, tt in ((0, tp), (1, c1), (0, c0)):
                for a1 in range(2):
                    aa = acc(2 * ch + a1, j)
                    e("v_cvt_pk_bf16_f32 v%d, v%d, v%d" % (tt + 2 * a1, aa, aa + 1))
                    e("v_cvt_pk_bf16_f32 v%d, v%d, v%d" % (tt + 2 * a1 + 1, aa + 2, aa + 3))
            for i in range(4):
                e("v_mov_b32_dpp v%d, v%d row_ror:8 row_mask:0xf bank_mask:0xc" % (c0 + i, c1 + i))
            e("buffer_store_dwordx4 %s, v%d, %s, s%d offen offset:%d %s" % (vr(c0, 4), V_OUT, srd(S_OUT), S_G0, j * 512, SF))
            for i in range(4):
                e("v_mov_b32_dpp v%d, v%d row_ror:8 row_mask:0xf bank_mask:0x3" % (c1 + i, tp + i))
            e("buffer_store_dwordx4 %s, v%d, %s, s%d offen offset:%d %s" % (vr(c1, 4), V_OUT, srd(S_OUT), S_IT, j * 512, SF))
            return
        for ch in range(2):
            tt = 240 + 4 * ((2 * t + ch) % 4)
            for a1 in range(2):
                aa = acc(2 * ch + a1, j)
                e("v_cvt_pk_bf16_f32 v%d, v%d, v%d" % (tt + 2 * a1, aa, aa + 1))
                e("v_cvt_pk_bf16_f32 v%d, v%d, v%d" % (tt + 2 * a1 + 1, aa + 2, aa + 3))
            e("buffer_store_dwordx4 %s, v%d, %s, s%d offen offset:%d %s" % (
                vr(tt, 4), V_OUT, srd(S_OUT), S_G0, j * 512 + ch * 64, SF))

    if FL:
        e("s_add_u32 s%d, s%d, 32768" % (S_IT, S_G0))
    ROT = int(opts.get("rot", 0))

    def rot_entry(pref):
        e("s_lshr_b32 s%d, s2, %d" % (S_T3, int(opts.get("rsh", 3))))
        e("s_and_b32 s%d, s%d, 7" % (S_T3, S_T3))
        e("s_mov_b32 s%d, 0" % S_CNT)
        for r in range(1, 8):
            e("s_cmp_eq_u32 s%d, %d" % (S_T3, r))
            e("s_cbranch_scc1 %s%d" % (pref, 7 - r))

    def rot_end(pref, j, done):
        e("s_add_u32 s%d, s%d, 1" % (S_CNT, S_CNT))
        e("s_cmp_eq_u32 s%d, 8" % S_CNT)
        if j == 0:
            e("s_cbranch_scc0 %s7" % pref)
        else:
            e("s_cbranch_scc1 %s" % done)

    if ROT:
        rot_entry("L_zl")
    for t, j in enumerate(range(7, -1, -1)):
        sb = 4 * (t % 2)
        em.label("L_zl%d" % j)
        e("ds_read_b32 v%d, v%d offset:%d" % (V_F, V_FA, F_ZL + 4 * j))
        for k4 in range(4):
            e(zread(4 + k4, j, sb + k4)[1])
        e("s_waitcnt lgkmcnt(0)")
        em.lg = []
        e("v_readfirstlane_b32 s%d, v%d" % (S_T0, V_F))
        e("s_cmp_eq_u32 s%d, 4" % S_T0)
        e("s_cbranch_scc0 L_zl%d" % j)
        for k4 in range(4):
            ab = AREG + 16 * k4
            for a in range(4):
                e("v_mfma_f32_16x16x32_bf16 %s, %s, %s, %s" % (vr(acc(a, j), 4), vr(ab + 4 * a, 4), vr(BREG + 4 * (sb + k4), 4), vr(acc(a, j), 4)))
        e("s_nop 7")
        epi(j, t)
        if ROT:
            rot_end("L_zl", j, "L_zdone")
    em.label("L_zdone")
    stamp(em, opts, 9)
    if opts.get("stamp"):
        e("s_waitcnt vmcnt(0)")
    stamp(em, opts, 10)
    stamp_out(em, opts)
    e("s_endpgm")

    em.label("L_low")
    em.vm = []
    em.lg = []
    e("s_setprio 3")
    assert ROT
    poll("L_xpl", V_EP, 0, 1)
    rot_entry("L_gs")
    for j in range(7, -1, -1):
        em.label("L_gs%d" % j)
        xrecv(j)
        e("s_branch L_gl%d" % j)
    for t, j in enumerate(range(7, -1, -1)):
        zreg = BREG + 16 + 4 * (t % 4)
        em.label("L_gl%d" % j)
        xrecv((j - 1) & 7)
        e("s_waitcnt lgkmcnt(1)")
        gate_tile(em, j, zreg, preg(j), role)
        e("ds_write_b128 v%d, %s offset:%d" % (V_ZP, vr(zreg, 4), j * 1024))
        e("s_mov_b64 exec, 1")
        e("ds_add_u32 v%d, v%d offset:%d" % (V_FA, V_ONE, F_ZL + 4 * j))
        e("s_mov_b64 exec, -1")
        if ROT:
            rot_end("L_gl", j, "L_gdone")
    em.label("L_gdone")
    e("s_waitcnt lgkmcnt(0)")
    stamp(em, opts, 6)
    stamp_out(em, opts)
    em.label("L_end")
    e("s_endpgm")

    txt = HEADER % (LDS_TOTAL, NAME, NAME, NAME) + "\n".join(em.lines) + FOOTER % NAME
    return txt


if __name__ == "__main__":
    out = sys.argv[1] if len(sys.argv) > 1 else "cdna_kernels/%s.s" % NAME
    opts = {}
    for a in sys.argv[2:]:
        k, v = a.split("=")
        opts[k] = int(v) if v.isdigit() else v
    open(out, "w").write(build(opts))
    print("wrote", out)
```
